```python
import torch

def _softmax(x, axis=-1):
    return torch.softmax(x, dim=axis)
def _gelu(x):
    return torch.nn.functional.gelu(x, approximate="tanh")
def _silu(x):
    return torch.nn.functional.silu(x)
def _sigmoid(x):
    return torch.sigmoid(x)
def _layernorm(x, axis=-1, eps=1e-5):
    m = x.mean(dim=axis, keepdim=True)
    v = x.var(dim=axis, keepdim=True, unbiased=False)
    return (x - m) / torch.sqrt(v + eps)
def _scatter_add(tgt, idx, src, axis=0):
    return tgt.clone().index_add_(axis, idx, src)
def _segment_sum(src, seg, n):
    out = torch.zeros((n,) + src.shape[1:], dtype=src.dtype)
    return out.index_add_(0, seg, src)
def _pad(x, pw):
    flat = tuple(v for pair in reversed(pw) for v in pair)
    return torch.nn.functional.pad(x, flat)

kernel_name = 'gated_mix__ssm_conv_s5__mixer_channel_mlp__prompt'

def setup_inputs():

    _w = (lambda a: (lambda t: t.to(torch.bfloat16) if t.is_floating_point() else t)(torch.as_tensor(a)))
    def _A_setup():
        B, S, D = 1, 2048, 1024
        P = D
        Lambda_re = -0.5 * (lambda _x: torch.exp(torch.as_tensor(_x)))((lambda *s: torch.randn(*s, dtype=torch.bfloat16) * 0.4)(P))
        Lambda_im = (lambda *s: torch.randn(*s, dtype=torch.bfloat16) * 0.8)(P) * 1.0
        B_re = (lambda *s: torch.randn(*s, dtype=torch.bfloat16) * 0.8)(P, D) * (D ** -0.5)
        B_im = (lambda *s: torch.randn(*s, dtype=torch.bfloat16) * 0.4)(P, D) * (D ** -0.5)
        C_re = (lambda *s: torch.randn(*s, dtype=torch.bfloat16) * 0.8)(D, P) * (P ** -0.5)
        C_im = (lambda *s: torch.randn(*s, dtype=torch.bfloat16) * 0.8)(D, P) * (P ** -0.5)
        log_dt = (lambda *s: torch.randn(*s, dtype=torch.bfloat16) * 0.4)(P) * 0.3 - 2.0
        Dskip = (lambda *s: torch.randn(*s, dtype=torch.bfloat16) * 0.1)(D)
        return {
            "x": _w((lambda *s: torch.randn(*s, dtype=torch.bfloat16) * 0.05)(B, S, D)),
            "Lambda_re": _w(Lambda_re),
            "Lambda_im": _w(Lambda_im),
            "B_re": _w(B_re),
            "B_im": _w(B_im),
            "C_re": _w(C_re),
            "C_im": _w(C_im),
            "log_dt": _w(log_dt),
            "Dskip": _w(Dskip),
        }
    _A_in = _A_setup()

    def _B_setup():
        B, S, D, F = 1, 2048, 1024, 3584
        return {
            "x": _w((lambda *s: torch.randn(*s, dtype=torch.bfloat16) * 0.05)(B, S, D)),
            "w1": _w((lambda *s: torch.randn(*s, dtype=torch.bfloat16) * 0.8)(D, F) * (D ** -0.5)),
            "b1": _w((lambda *s: torch.randn(*s, dtype=torch.bfloat16) * 0.2)(F)),
            "w2": _w((lambda *s: torch.randn(*s, dtype=torch.bfloat16) * 0.05)(F, D) * (F ** -0.5)),
            "b2": _w((lambda *s: torch.randn(*s, dtype=torch.bfloat16) * 0.05)(D)),
        }
    _B_in = _B_setup()

    return {
        "A_x": _A_in["x"],
        "A_Lambda_re": _A_in["Lambda_re"],
        "A_Lambda_im": _A_in["Lambda_im"],
        "A_B_re": _A_in["B_re"],
        "A_B_im": _A_in["B_im"],
        "A_C_re": _A_in["C_re"],
        "A_C_im": _A_in["C_im"],
        "A_log_dt": _A_in["log_dt"],
        "A_Dskip": _A_in["Dskip"],
        "B_x": _B_in["x"],
        "B_w1": _B_in["w1"],
        "B_b1": _B_in["b1"],
        "B_w2": _B_in["w2"],
        "B_b2": _B_in["b2"],
        "gate_w": _w((lambda *s: torch.randn(*s, dtype=torch.bfloat16) * 0.05)(1024) * 16.0),
    }

def reference(A_x, A_Lambda_re, A_Lambda_im, A_B_re, A_B_im, A_C_re, A_C_im, A_log_dt, A_Dskip, B_x, B_w1, B_b1, B_w2, B_b2, gate_w):
    def _A_ref(x, Lambda_re, Lambda_im, B_re, B_im, C_re, C_im, log_dt, Dskip):
        Bsz, L, H = x.shape
        Lam = Lambda_re + 1j * Lambda_im
        Bmat = B_re + 1j * B_im
        Cmat = C_re + 1j * C_im
        dt = torch.exp(log_dt)
        Lam_bar = torch.exp(dt * Lam)
        B_bar = ((Lam_bar - 1.0) / Lam)[:, None] * Bmat
        Bu = torch.einsum("bld,pd->blp", x + 0j, B_bar)
        h = torch.zeros_like(Bu[:, 0, :])
        hs = []
        for t in range(L):
            h = Lam_bar[None, :] * h + Bu[:, t, :]
            hs.append(h)
        hseq = torch.stack(hs, 1)
        y = 2.0 * torch.einsum("blp,dp->bld", hseq, Cmat).real + x * Dskip[None, None, :]
        return y

    def _B_ref(x, w1, b1, w2, b2):
        y = _layernorm(x, axis=-1)
        h = _gelu(torch.einsum("bsd,df->bsf", y, w1) + b1)
        return torch.einsum("bsf,fd->bsd", h, w2) + b2

    x = A_x
    g = _sigmoid((x * gate_w).sum(-1, keepdims=True))
    a = _A_ref(x, A_Lambda_re, A_Lambda_im, A_B_re, A_B_im, A_C_re, A_C_im, A_log_dt, A_Dskip)
    b = _B_ref(x, B_w1, B_b1, B_w2, B_b2)
    return g * a + (1 - g) * b
```

```python
import os
from gen import *
NS = 4
SLOT = 32768
BOFF = 16384
LDS = NS * SLOT
VGPR = 256 if "stamp" in EXP else 232
KP = int(os.environ.get("KP", "48"))
ACC = 128
STASH = 64
YF = [192, 208]
WF = [16, 32]

def acc(t, i): return ACC + (t * 4 + i) * 4

def gen_s2(A):
    kernel_head(A, "s2_kernel")
    A("s_cmp_ge_u32 s2, 256")
    A("s_cbranch_scc1 s2_done")
    A(f"s_load_dwordx2 s[36:37], s[0:1], {KA['x']}")
    A(f"s_load_dwordx4 s[40:43], s[0:1], {KA['cre']}")
    A(f"s_load_dwordx2 s[44:45], s[0:1], {KA['dskip']}")
    A(f"s_load_dwordx4 s[48:51], s[0:1], {KA['w2']}")
    A(f"s_load_dwordx2 s[52:53], s[0:1], {KA['out']}")
    A(f"s_load_dwordx4 s[56:59], s[0:1], {KA['dbg']}")
    A("v_lshrrev_b32 v1, 6, v0")
    A("v_and_b32 v2, 63, v0")
    A("v_readfirstlane_b32 s32, v1")
    A("s_and_b32 s3, s2, 7")
    A("s_lshr_b32 s33, s2, 3")
    A("s_and_b32 s34, s3, 1")
    A("s_lshl_b32 s34, s34, 3")
    A("s_and_b32 s35, s33, 7")
    A("s_add_u32 s34, s34, s35")
    A("s_bfe_u32 s35, s3, 0x10001")
    A("s_lshl_b32 s35, s35, 2")
    A("s_lshr_b32 s33, s33, 3")
    A("s_add_u32 s35, s35, s33")
    A("s_lshr_b32 s33, s3, 2")
    A("v_lshrrev_b32 v3, 3, v2")
    A("v_and_b32 v4, 7, v2")
    A("v_lshrrev_b32 v5, 1, v3")
    A("v_xor_b32 v4, v4, v5")
    A("v_lshlrev_b32 v4, 4, v4")
    A("v_and_b32 v6, 15, v2")
    A("v_lshrrev_b32 v7, 4, v2")
    A("v_lshrrev_b32 v8, 1, v6")
    A("v_xor_b32 v8, v8, v7")
    A("v_lshlrev_b32 v8, 4, v8")
    A("v_lshl_add_u32 v8, v6, 7, v8")
    A("s_lshr_b32 s62, s32, 2")
    A("s_bfe_u32 s60, s32, 0x10001")
    A("s_and_b32 s61, s32, 1")
    A("s_lshl_b32 s63, s62, 6")
    A("v_xor_b32 v8, s63, v8")
    A("s_lshl_b32 s63, s60, 13")
    A("v_add_u32 v48, s63, v8")
    A(f"v_add_u32 v49, {2*SLOT}, v48")
    A("s_lshl_b32 s63, s61, 13")
    A(f"s_add_u32 s63, s63, {BOFF}")
    A("v_add_u32 v50, s63, v8")
    A(f"v_add_u32 v51, {2*SLOT}, v50")
    A("v_lshrrev_b32 v9, 1, v7")
    A("v_lshlrev_b32 v9, 12, v9")
    A("v_and_b32 v10, 1, v7")
    A("v_lshrrev_b32 v11, 2, v6")
    A("v_lshl_add_u32 v11, v10, 3, v11")
    A("v_lshl_add_u32 v9, v11, 6, v9")
    A("v_and_b32 v11, 3, v6")
    A("v_lshl_add_u32 v9, v11, 3, v9")
    A("v_lshl_add_u32 v9, v10, 5, v9")
    A("s_lshl_b32 s63, s62, 13")
    A("s_lshl_b32 s64, s61, 11")
    A("s_add_u32 s63, s63, s64")
    A(f"s_add_u32 s63, s63, {BOFF}")
    A("v_add_u32 v52, s63, v9")
    A("v_xor_b32 v53, 32, v52")
    A(f"v_add_u32 v54, {2*SLOT}, v52")
    A(f"v_add_u32 v55, {2*SLOT}, v53")
    A("s_movk_i32 s63, 11264")
    A("v_mul_lo_u32 v9, v3, s63")
    A("v_add_u32 v56, v9, v4")
    A("v_xor_b32 v57, 64, v56")
    A("s_lshl_b32 s20, s34, 7")
    A("s_lshl_b32 s63, s32, 4")
    A("s_add_u32 s20, s20, s63")
    A("s_mul_i32 s20, s20, 11264")
    A("s_lshl_b32 s29, s32, 11")
    A(f"s_add_u32 s30, s29, {BOFF}")
    A("v_lshrrev_b32 v9, 2, v2")
    A("v_and_b32 v10, 3, v2")
    A("v_lshrrev_b32 v11, 5, v2")
    A("v_lshlrev_b32 v11, 1, v11")
    A("v_xor_b32 v10, v10, v11")
    A("v_lshlrev_b32 v10, 4, v10")
    A("v_lshl_add_u32 v60, v9, 11, v10")
    A("v_lshl_add_u32 v58, v3, 11, v4")
    A("v_xor_b32 v59, 64, v58")
    A("s_waitcnt lgkmcnt(0)")
    srd(A, 4, 58, H_BYTES, WS_H)
    srd(A, 12, 48, 3584 * 2048)
    srd(A, 16, 58, 8192, WS_G)
    srd(A, 68, 58, 8 << 20, WS_T)
    srd(A, 72, 56, 256)
    stamp(A, 0, 58, 1)
    A("s_lshl_b32 s63, s34, 7")
    A("s_lshl_b32 s64, s60, 6")
    A("s_add_u32 s65, s63, s64")
    A("s_lshl_b32 s63, s65, 2")
    A("v_lshlrev_b32 v9, 2, v6")
    for i in range(4):
        A(f"buffer_load_dword v{12+i}, v9, s[16:19], s63 offen offset:{64*i}")
    for r in range(64):
        A(f"v_mov_b32 v{ACC+r}, 0")
    A("s_lshr_b32 s63, s32, 1")
    A("s_lshl_b32 s24, s63, 15")
    A("s_lshl_b32 s63, s35, 8")
    A("s_add_u32 s24, s24, s63")
    A("s_lshl_b32 s63, s61, 7")
    A("s_add_u32 s24, s24, s63")
    A("s_cmp_eq_u32 s33, 0")
    A("s_cbranch_scc1 s2_wphase_p")

    A(f"s_add_u32 s21, s20, {3584*2}")
    A(f"s_add_u32 s22, s21, {8*11264}")
    A("s_lshl_b32 s26, s35, 7")
    A("s_lshl_b32 s63, s32, 4")
    A("s_add_u32 s26, s26, s63")
    A("s_lshl_b32 s26, s26, 11")
    A(f"s_add_u32 s27, s26, {8*2048}")
    srd(A, 8, 40, 2 << 20)
    def dma_c(slot):
        return [[f"s_add_u32 m0, s29, {slot*SLOT}", "s_nop 0", "buffer_load_dwordx4 v56, s[4:7], s21 offen lds"],
                [f"s_add_u32 m0, s29, {slot*SLOT+1024}", "s_add_u32 s21, s21, 128", "buffer_load_dwordx4 v57, s[4:7], s22 offen lds"],
                [f"s_add_u32 m0, s30, {slot*SLOT}", "s_add_u32 s22, s22, 128", "buffer_load_dwordx4 v58, s[8:11], s26 offen lds"],
                [f"s_add_u32 m0, s30, {slot*SLOT+1024}", "s_add_u32 s26, s26, 128", "buffer_load_dwordx4 v59, s[8:11], s27 offen lds", "s_add_u32 s27, s27, 128"]]
    def reads_c(st, slot):
        out = []
        for t in range(4):
            w = WF[st] + 4 * t; y = YF[st] + 4 * t
            o = (slot & 1) * SLOT + t * 2048
            out.append(f"ds_read_b128 v[{w}:{w+3}], v{50 + (slot >> 1)} offset:{o}")
            out.append(f"ds_read_b128 v[{y}:{y+3}], v{48 + (slot >> 1)} offset:{o}")
        return out
    def switch_c():
        return ["s_cmp_eq_u32 s31, %d" % SWB[0], "s_cselect_b32 s8, s42, s8", "s_cselect_b32 s9, s43, s9",
                "s_cselect_b32 s63, 2048, 0", "s_sub_u32 s26, s26, s63", "s_sub_u32 s27, s27, s63"]
    SWB = [0]
    nt_c = 32
    nbody = nt_c // 4 - 1
    SWB[0] = nbody - 3
    mainloop(A, "s2c", reads_c, dma_c, nt_c, switch_c)
    A("s_nop 7"); A("s_nop 7")
    for i in range(4):
        A(f"v_add_f32 v{8+i}, v{12+i}, v{12+i}")
    for t in range(4):
        for i in range(4):
            for r in range(4):
                A(f"v_mul_f32 v{STASH + (t*4+i)*4 + r}, v{8+i}, v{acc(t,i)+r}")
    for r in range(64):
        A(f"v_mov_b32 v{ACC+r}, 0")
    A("s_barrier")
    A(f"s_add_u32 s21, s20, {KP*128}")
    A(f"s_add_u32 s24, s24, {KP*64*2048}")
    A(f"s_mov_b32 s66, {(56-KP)//4 - 1}")
    A("s_branch s2_wphase")
    A.label("s2_wphase_p")
    A("s_mov_b32 s21, s20")
    A(f"s_mov_b32 s66, {KP//4 - 1}")
    A.label("s2_wphase")
    A(f"s_add_u32 s22, s21, {8*11264}")
    A("s_add_u32 s25, s24, 64")
    def dma_w(slot):
        return [[f"s_add_u32 m0, s29, {slot*SLOT}", "s_nop 0", "buffer_load_dwordx4 v56, s[4:7], s21 offen lds"],
                [f"s_add_u32 m0, s29, {slot*SLOT+1024}", "s_add_u32 s21, s21, 128", "buffer_load_dwordx4 v57, s[4:7], s22 offen lds"],
                [f"s_add_u32 m0, s30, {slot*SLOT}", "s_add_u32 s22, s22, 128", "buffer_load_dwordx4 v60, s[12:15], s24 offen lds"],
                [f"s_add_u32 m0, s30, {slot*SLOT+1024}", f"s_add_u32 s24, s24, {64*2048}", "buffer_load_dwordx4 v60, s[12:15], s25 offen lds", f"s_add_u32 s25, s25, {64*2048}"]]
    def reads_w(st, slot):
        out = []
        for t in range(4):
            w = WF[st] + 4 * t; y = YF[st] + 4 * t
            o = (slot & 1) * SLOT + (t >> 1) * 1024
            b = 52 + 2 * (slot >> 1) + (t & 1)
            out.append(f"ds_read_b64_tr_b16 v[{w}:{w+1}], v{b} offset:{o}")
            out.append(f"ds_read_b64_tr_b16 v[{w+2}:{w+3}], v{b} offset:{o+256}")
            out.append(f"ds_read_b128 v[{y}:{y+3}], v{48 + (slot >> 1)} offset:{(slot & 1) * SLOT + t * 2048}")
        return out
    stamp(A, 1, 58, 1)
    mainloop(A, "s2w", reads_w, dma_w, None, None, cntreg="s66")
    stamp(A, 2, 58, 1)
    A("s_nop 7"); A("s_nop 7")
    for i in range(4):
        A(f"v_sub_f32 v{8+i}, 1.0, v{12+i}")
        round_bf16(A, 8+i, 8+i)
    A("s_cmp_eq_u32 s33, 0")
    A("s_cbranch_scc1 s2_scale_p")
    for t in range(4):
        for i in range(4):
            for r in range(4):
                A(f"v_fma_f32 v{acc(t,i)+r}, v{8+i}, v{acc(t,i)+r}, v{STASH + (t*4+i)*4 + r}")
    A("s_branch s2_scaled")
    A.label("s2_scale_p")
    for t in range(4):
        for i in range(4):
            for r in range(4):
                A(f"v_mul_f32 v{acc(t,i)+r}, v{8+i}, v{acc(t,i)+r}")
    A.label("s2_scaled")
    A("s_barrier")
    A("s_lshl_b32 s63, s32, 13")
    A("v_lshlrev_b32 v9, 4, v2")
    A("v_add_u32 v10, s63, v9")
    A("s_xor_b32 s63, s63, 0x8000")
    A("v_add_u32 v11, s63, v9")
    A("s_cmp_eq_u32 s62, 0")
    A("s_cbranch_scc1 s2_red0")
    for t in range(4):
        for j in range(2):
            a = acc(t, j)
            A(f"ds_write_b128 v10, v[{a}:{a+3}] offset:{(t*2+j)*1024}")
    A("s_waitcnt lgkmcnt(0)")
    for t in range(4):
        for j in range(2):
            for r in range(4):
                A(f"v_mov_b32 v{acc(t,j)+r}, v{acc(t,2+j)+r}")
    A("v_mov_b32 v12, v14"); A("v_mov_b32 v13, v15")
    A("s_add_u32 s65, s65, 32")
    A("s_branch s2_red1")
    A.label("s2_red0")
    for t in range(4):
        for j in range(2):
            a = acc(t, 2 + j)
            A(f"ds_write_b128 v10, v[{a}:{a+3}] offset:{(t*2+j)*1024}")
    A("s_waitcnt lgkmcnt(0)")
    A.label("s2_red1")
    A("s_barrier")
    for t in range(4):
        for j in range(2):
            d = 64 + (t*2+j)*4
            A(f"ds_read_b128 v[{d}:{d+3}], v11 offset:{(t*2+j)*1024}")
    A("v_lshlrev_b32 v9, 12, v6")
    A("v_lshl_add_u32 v9, v7, 4, v9")
    A("s_lshl_b32 s63, s65, 12")
    A("s_lshl_b32 s64, s35, 9")
    A("s_add_u32 s63, s63, s64")
    A("s_lshl_b32 s64, s61, 8")
    A("s_add_u32 s63, s63, s64")
    A(f"s_add_u32 s64, s63, {16*4096}")
    A("s_lshl_b32 s80, s34, 3")
    A("s_add_u32 s80, s80, s35")
    A("s_and_b32 s81, s80, 1")
    A("s_lshl_b32 s81, 1, s81")
    A("s_lshr_b32 s80, s80, 1")
    A("s_lshl_b32 s80, s80, 2")
    A("v_mov_b32 v62, 0")
    A("s_waitcnt lgkmcnt(0)")
    for t in range(4):
        for j in range(2):
            for r in range(4):
                A(f"v_add_f32 v{acc(t,j)+r}, v{acc(t,j)+r}, v{64+(t*2+j)*4+r}")
    A("s_cmp_eq_u32 s33, 0")
    A("s_cbranch_scc1 s2_fin_p")
    srd(A, 8, 36, 4 << 20)
    srd(A, 12, 44, 2048)
    srd(A, 16, 50, 2048)
    A("v_lshrrev_b32 v10, 1, v9")
    A("s_lshr_b32 s82, s63, 1")
    A("s_lshr_b32 s83, s64, 1")
    A("v_lshlrev_b32 v11, 3, v7")
    A("s_lshl_b32 s84, s35, 8")
    A("s_lshl_b32 s85, s61, 7")
    A("s_add_u32 s84, s84, s85")
    for t in range(4):
        A(f"buffer_load_dwordx2 v[{64+2*t}:{65+2*t}], v11, s[12:15], s84 offen offset:{32*t}")
        A(f"buffer_load_dwordx2 v[{72+2*t}:{73+2*t}], v11, s[16:19], s84 offen offset:{32*t}")
        for j in range(2):
            d = 80 + (t*2+j)*2
            A(f"buffer_load_dwordx2 v[{d}:{d+1}], v10, s[8:11], s{82+j} offen offset:{32*t}")
    for j in range(2):
        A(f"v_sub_f32 v{14+j}, 1.0, v{12+j}")
        round_bf16(A, 14+j, 14+j)
    A("s_mov_b32 s86, 0xffff0000")
    A("s_waitcnt vmcnt(0)")
    def unp(d, s):
        A(f"v_lshlrev_b32 v{d}, 16, v{s}")
        A(f"v_and_b32 v{d+1}, s86, v{s}")
        A(f"v_lshlrev_b32 v{d+2}, 16, v{s+1}")
        A(f"v_and_b32 v{d+3}, s86, v{s+1}")
    for t in range(4):
        unp(96, 64+2*t)
        unp(100, 72+2*t)
        for j in range(2):
            unp(104, 80+(t*2+j)*2)
            for r in range(4): A(f"v_mul_f32 v{104+r}, v{104+r}, v{96+r}")
            A("v_cvt_pk_bf16_f32 v108, v104, v105")
            A("v_cvt_pk_bf16_f32 v109, v106, v107")
            unp(104, 108)
            a = acc(t, j)
            for r in range(4): A(f"v_fmac_f32 v{a+r}, v{12+j}, v{104+r}")
            for r in range(4): A(f"v_fmac_f32 v{a+r}, v{14+j}, v{100+r}")
            A(f"buffer_store_dwordx4 v[{a}:{a+3}], v9, s[68:71], s{63+j} offen offset:{64*t} sc0 sc1")
    A("s_waitcnt vmcnt(0)")
    A("s_barrier")
    A("s_cmp_lg_u32 s32, 0")
    A("s_cbranch_scc1 s2_done")
    A("v_mov_b32 v61, s81")
    A("s_mov_b64 exec, 1")
    A("buffer_atomic_or v61, v62, s[72:75], s80 offen sc1")
    stamp(A, 3, 58, 1)
    A("s_endpgm")
    A.label("s2_fin_p")
    srd(A, 8, 52, 8 << 20)
    A("s_cmp_lg_u32 s32, 0")
    A("s_cbranch_scc1 s2_pwait")
    A("s_mov_b32 s82, 0x100000")
    A.label("s2_poll")
    A("buffer_load_dword v61, v62, s[72:75], s80 offen sc0 sc1")
    A("s_waitcnt vmcnt(0)")
    A("v_readfirstlane_b32 s83, v61")
    A("s_and_b32 s83, s83, s81")
    A("s_cbranch_scc1 s2_pwait")
    A("s_sleep 2")
    A("s_sub_u32 s82, s82, 1")
    A("s_cmp_lg_u32 s82, 0")
    A("s_cbranch_scc1 s2_poll")
    A.label("s2_pwait")
    A("s_barrier")
    stamp(A, 3, 58, 1)
    for t in range(4):
        for j in range(2):
            d = 64 + (t*2+j)*4
            A(f"buffer_load_dwordx4 v[{d}:{d+3}], v9, s[68:71], s{63+j} offen offset:{64*t} sc0 sc1")
    n = 0
    for t in range(4):
        for j in range(2):
            d = 64 + (t*2+j)*4; a = acc(t, j)
            A(f"s_waitcnt vmcnt({7})" if True else "")
            break
        break
    k = 0
    for t in range(4):
        for j in range(2):
            d = 64 + (t*2+j)*4; a = acc(t, j)
            A(f"s_waitcnt vmcnt(7)")
            for r in range(4): A(f"v_add_f32 v{d+r}, v{d+r}, v{a+r}")
            A(f"buffer_store_dwordx4 v[{d}:{d+3}], v9, s[8:11], s{63+j} offen offset:{64*t}")
            k += 1
    stamp(A, 4, 58, 1)
    A.label("s2_done")
    A("s_endpgm")

def mfmas(st):
    out = []
    for t in range(4):
        for i in range(4):
            a = acc(t, i)
            out.append(f"v_mfma_f32_16x16x32_bf16 v[{a}:{a+3}], v[{WF[st]+4*t}:{WF[st]+4*t+3}], v[{YF[st]+4*i}:{YF[st]+4*i+3}], v[{a}:{a+3}]")
    return out

def mainloop(A, tag, reads, dma, ntiles, switch, cntreg=None):
    for s in range(4):
        for g in dma(s):
            for x in g: A(x)
    A("s_waitcnt vmcnt(12)")
    A("s_barrier")
    for x in reads(0, 0): A(x)
    A("s_waitcnt vmcnt(8) lgkmcnt(0)")
    A("s_barrier")
    if cntreg is None:
        A(f"s_mov_b32 s31, {ntiles//4 - 1}")
    else:
        A(f"s_mov_b32 s31, {cntreg}")
    def it(k, do_dma, do_read, vm):
        st = k & 1
        rd = [[r] for r in reads(st ^ 1, (k + 1) % 4)] if do_read else []
        dm = dma(k % 4) if do_dma else []
        side = []
        while rd or dm:
            if rd: side.append(rd.pop(0))
            if rd: side.append(rd.pop(0))
            if rd: side.append(rd.pop(0))
            if dm: side.append(dm.pop(0))
        for x in interleave(mfmas(st), side): A(x)
        if vm is not None:
            A(f"s_waitcnt vmcnt({vm}) lgkmcnt(0)")
            A("s_barrier")
    A.label(f"{tag}_loop")
    if switch:
        for x in switch(): A(x)
    for k in range(4):
        it(k, True, True, 8)
    A("s_sub_u32 s31, s31, 1")
    A("s_cmp_lg_u32 s31, 0")
    A(f"s_cbranch_scc1 {tag}_loop")
    it(0, False, True, 4)
    it(1, False, True, 0)
    it(2, False, True, 0)
    it(3, False, False, None)
```

```python
import struct, sys, os
EXP = os.environ.get("EXP", "").split(",")

NAME = "gated_mix__ssm_conv_s5__mixer_channel_mlp__prompt"
KA = dict(x=0, lre=8, lim=16, bre=24, bim=32, cre=40, cim=48, logdt=56, dskip=64, bx=72,
          w1=80, b1=88, w2=96, b2=104, gw=112, out=120, dbg=128, ws=136)
WS_Y = 0
WS_G = 4 << 20
WS_E = 5 << 20
WS_H = 8 << 20
WS_T = 32 << 20
HP = 11264
H_BYTES = 2048 * HP

def f32(x):
    return "0x%08x" % struct.unpack("<I", struct.pack("<f", x))[0]

class Asm:
    def __init__(self):
        self.lines = []
        self.cnt = 0
    def __call__(self, s):
        self.lines.append("    " + s)
    def label(self, s):
        self.lines.append(s + ":")
    def newlabel(self, p="L"):
        self.cnt += 1
        return f"{p}_{self.cnt}"
    def comment(self, s):
        self.lines.append("    ; " + s)
    def text(self):
        return "\n".join(self.lines) + "\n"

def vr(a, n=1):
    return f"v{a}" if n == 1 else f"v[{a}:{a+n-1}]"
def sr(a, n=1):
    return f"s{a}" if n == 1 else f"s[{a}:{a+n-1}]"

def srd(A, d, lo, nbytes, off=0):
    if off:
        A(f"s_add_u32 s{d}, s{lo}, {off}")
        A(f"s_addc_u32 s{d+1}, s{lo+1}, 0")
    else:
        A(f"s_mov_b32 s{d}, s{lo}")
        A(f"s_mov_b32 s{d+1}, s{lo+1}")
    A(f"s_mov_b32 s{d+2}, {nbytes}")
    A(f"s_mov_b32 s{d+3}, 0x00020000")

def stamp(A, idx, wsreg, kern=0, wavereg="s32"):
    if "stamp" not in EXP:
        return
    lab = A.newlabel("stamp")
    A(f"s_cmp_lg_u32 {wavereg}, 0")
    A(f"s_cbranch_scc1 {lab}")
    A("s_memrealtime s[92:93]")
    A("s_memtime s[90:91]")
    A(f"s_add_u32 s96, s{wsreg}, {(48 << 20) + kern * 65536}")
    A(f"s_addc_u32 s97, s{wsreg+1}, 0")
    A("s_mov_b32 s98, 65536")
    A("s_mov_b32 s99, 0x00020000")
    A("s_lshl_b32 s94, s2, 5")
    A("s_waitcnt lgkmcnt(0)")
    A("v_mov_b32 v254, s92")
    A("v_mov_b32 v255, 0")
    A(f"buffer_store_dword v254, v255, s[96:99], s94 offen offset:{idx*4}")
    A("v_mov_b32 v253, s90")
    A("s_add_u32 s94, s94, 32768")
    A(f"buffer_store_dword v253, v255, s[96:99], s94 offen offset:{idx*4}")
    A.label(lab)

def kernel_head(A, label):
    A.lines.append(f".globl {label}")
    A.lines.append(".p2align 8")
    A.lines.append(f".type {label},@function")
    A.label(label)

def kd(label, vgpr, sgpr):
    acc = (vgpr + 3) // 4 * 4
    return f""".amdhsa_kernel {label}
  .amdhsa_next_free_vgpr {vgpr}
  .amdhsa_next_free_sgpr {sgpr}
  .amdhsa_accum_offset {acc}
  .amdhsa_group_segment_fixed_size 0
  .amdhsa_kernarg_size 144
  .amdhsa_user_sgpr_count 2
  .amdhsa_user_sgpr_kernarg_segment_ptr 1
  .amdhsa_system_sgpr_workgroup_id_x 1
.end_amdhsa_kernel
"""

def wave_sum(A, regs, stmp):
    for mode in ("quad_perm:[1,0,3,2]", "quad_perm:[2,3,0,1]", "row_half_mirror", "row_mirror"):
        A("s_nop 1")
        for r in regs:
            A(f"v_add_f32_dpp v{r}, v{r}, v{r} {mode} row_mask:0xf bank_mask:0xf")
    for r in regs:
        A("s_nop 1")
        for i in range(4):
            A(f"v_readlane_b32 s{stmp+i}, v{r}, {16*i}")
        A("s_nop 1")
        A(f"v_mov_b32 v{r}, s{stmp}")
        A(f"v_add_f32 v{r}, s{stmp+1}, v{r}")
        A(f"v_add_f32 v{r}, s{stmp+2}, v{r}")
        A(f"v_add_f32 v{r}, s{stmp+3}, v{r}")

def round_bf16(A, d, s):
    A(f"v_cvt_pk_bf16_f32 v{d}, v{s}, v{s}")
    A(f"v_lshlrev_b32 v{d}, 16, v{d}")

def gen_pre(A):
    kernel_head(A, "pre_kernel")
    A("s_cmp_ge_u32 s2, 512")
    A("s_cbranch_scc1 pre_done")
    A(f"s_load_dwordx2 s[4:5], s[0:1], {KA['x']}")
    A(f"s_load_dwordx2 s[6:7], s[0:1], {KA['gw']}")
    A(f"s_load_dwordx2 s[8:9], s[0:1], {KA['ws']}")
    A("v_lshrrev_b32 v1, 6, v0")
    A("v_and_b32 v2, 63, v0")
    A("v_readfirstlane_b32 s10, v1")
    A("v_lshlrev_b32 v3, 4, v2")
    A("s_lshl_b32 s11, s2, 2")
    A("s_add_u32 s11, s11, s10")
    A("s_lshl_b32 s12, s11, 11")
    A("s_waitcnt lgkmcnt(0)")
    srd(A, 16, 4, 4 << 20)
    srd(A, 20, 6, 2048)
    srd(A, 24, 8, 4 << 20, WS_Y)
    srd(A, 28, 8, 8192, WS_G)
    A("buffer_load_dwordx4 v[4:7], v3, s[16:19], s12 offen")
    A("buffer_load_dwordx4 v[8:11], v3, s[16:19], s12 offen offset:1024")
    A("buffer_load_dwordx4 v[12:15], v3, s[20:23], 0 offen")
    A("buffer_load_dwordx4 v[16:19], v3, s[20:23], 0 offen offset:1024")
    A("s_mov_b32 s13, 0xffff0000")
    A("s_waitcnt vmcnt(2)")
    for i in range(8):
        A(f"v_lshlrev_b32 v{20+2*i}, 16, v{4+i}")
        A(f"v_and_b32 v{21+2*i}, s13, v{4+i}")
    A("s_waitcnt vmcnt(0)")
    for i in range(8):
        A(f"v_lshlrev_b32 v{36+2*i}, 16, v{12+i}")
        A(f"v_and_b32 v{37+2*i}, s13, v{12+i}")
    for i in range(16):
        A(f"v_mul_f32 v{36+i}, v{20+i}, v{36+i}")
    for i in range(8):
        A(f"v_cvt_pk_bf16_f32 v{12+i}, v{36+2*i}, v{37+2*i}")
    for i in range(8):
        A(f"v_lshlrev_b32 v{36+2*i}, 16, v{12+i}")
        A(f"v_and_b32 v{37+2*i}, s13, v{12+i}")
    A("v_add_f32 v52, v20, v21")
    A("v_add_f32 v53, v36, v37")
    for i in range(2, 16):
        A(f"v_add_f32 v52, v52, v{20+i}")
        A(f"v_add_f32 v53, v53, v{36+i}")
    wave_sum(A, [52, 53], 32)
    A(f"v_mul_f32 v52, {f32(1.0/1024)}, v52")
    for i in range(16):
        A(f"v_sub_f32 v{36+i}, v{20+i}, v52")
    A("v_mul_f32 v54, v36, v36")
    for i in range(1, 16):
        A(f"v_fmac_f32 v54, v{36+i}, v{36+i}")
    wave_sum(A, [54], 32)
    A(f"v_mul_f32 v54, {f32(1.0/1024)}, v54")
    round_bf16(A, 54, 54)
    A(f"v_add_f32 v54, {f32(1e-5)}, v54")
    round_bf16(A, 54, 54)
    A("v_sqrt_f32 v54, v54")
    A("s_nop 0")
    round_bf16(A, 54, 54)
    A("v_rcp_f32 v54, v54")
    round_bf16(A, 52, 52)
    for i in range(16):
        A(f"v_sub_f32 v{36+i}, v{20+i}, v52")
    for i in range(8):
        A(f"v_cvt_pk_bf16_f32 v{12+i}, v{36+2*i}, v{37+2*i}")
    for i in range(8):
        A(f"v_lshlrev_b32 v{36+2*i}, 16, v{12+i}")
        A(f"v_and_b32 v{37+2*i}, s13, v{12+i}")
    for i in range(16):
        A(f"v_mul_f32 v{36+i}, v{36+i}, v54")
    for i in range(8):
        A(f"v_cvt_pk_bf16_f32 v{4+i}, v{36+2*i}, v{37+2*i}")
    A("buffer_store_dwordx4 v[4:7], v3, s[24:27], s12 offen")
    A("buffer_store_dwordx4 v[8:11], v3, s[24:27], s12 offen offset:1024")
    round_bf16(A, 53, 53)
    A(f"v_mul_f32 v53, {f32(-1.4426950408889634)}, v53")
    A("v_exp_f32 v53, v53")
    A("s_nop 0")
    A("v_add_f32 v53, 1.0, v53")
    A("v_rcp_f32 v53, v53")
    A("s_nop 0")
    round_bf16(A, 53, 53)
    A("s_lshl_b32 s14, s11, 2")
    A("v_mov_b32 v55, 0")
    A("v_cmp_eq_u32 vcc, 0, v2")
    A("s_and_saveexec_b64 s[34:35], vcc")
    A("buffer_store_dword v53, v55, s[28:31], s14 offen")
    A.label("pre_done")
    A("s_endpgm")

def interleave(main, side):
    out = []
    n, m = len(main), len(side)
    j = 0
    for i, x in enumerate(main):
        out.append(x)
        if j < m:
            out.extend(side[j]); j += 1
    while j < m:
        out.extend(side[j]); j += 1
    return out

SLOT1 = 61440
BOFF1 = 32768

def lam_consts(A, vld, vlre, vlim, out, t):
    lr, li, cr, ci = out
    t0, t1, t2, t3, t4, t5 = t
    A(f"v_mul_f32 v{t0}, {f32(1.4426950408889634)}, v{vld}")
    A(f"v_exp_f32 v{t0}, v{t0}")
    A("s_nop 0")
    round_bf16(A, t0, t0)
    A(f"v_mul_f32 v{t1}, v{t0}, v{vlre}")
    A(f"v_mul_f32 v{t2}, v{t0}, v{vlim}")
    A(f"v_mul_f32 v{t1}, {f32(1.4426950408889634)}, v{t1}")
    A(f"v_exp_f32 v{t1}, v{t1}")
    A(f"v_mul_f32 v{t2}, {f32(0.15915494309189535)}, v{t2}")
    A(f"v_rndne_f32 v{t3}, v{t2}")
    A(f"v_sub_f32 v{t2}, v{t2}, v{t3}")
    A(f"v_cos_f32 v{t3}, v{t2}")
    A(f"v_sin_f32 v{t4}, v{t2}")
    A("s_nop 0")
    A(f"v_mul_f32 v{lr}, v{t1}, v{t3}")
    A(f"v_mul_f32 v{li}, v{t1}, v{t4}")
    if cr is None:
        return
    A(f"v_add_f32 v{t0}, -1.0, v{lr}")
    A(f"v_mul_f32 v{t1}, v{vlre}, v{vlre}")
    A(f"v_fmac_f32 v{t1}, v{vlim}, v{vlim}")
    A(f"v_rcp_f32 v{t1}, v{t1}")
    A(f"v_mul_f32 v{t2}, v{t0}, v{vlre}")
    A(f"v_fmac_f32 v{t2}, v{li}, v{vlim}")
    A(f"v_mul_f32 v{t3}, v{li}, v{vlre}")
    A(f"v_fma_f32 v{t3}, -v{t0}, v{vlim}, v{t3}")
    A(f"v_mul_f32 v{cr}, v{t2}, v{t1}")
    A(f"v_mul_f32 v{ci}, v{t3}, v{t1}")

def csquare(A, r, i, t):
    A(f"v_mul_f32 v{t}, v{i}, v{i}")
    A(f"v_mul_f32 v{i}, v{r}, v{i}")
    A(f"v_fma_f32 v{r}, v{r}, v{r}, -v{t}")
    A(f"v_add_f32 v{i}, v{i}, v{i}")

def gen_s1(A):
    kernel_head(A, "s1_kernel")
    A("s_cmp_ge_u32 s2, 256")
    A("s_cbranch_scc1 s1_done")
    A(f"s_load_dwordx2 s[36:37], s[0:1], {KA['x']}")
    A(f"s_load_dwordx4 s[40:43], s[0:1], {KA['lre']}")
    A(f"s_load_dwordx4 s[44:47], s[0:1], {KA['bre']}")
    A(f"s_load_dwordx2 s[48:49], s[0:1], {KA['logdt']}")
    A(f"s_load_dwordx4 s[52:55], s[0:1], {KA['w1']}")
    A(f"s_load_dwordx4 s[56:59], s[0:1], {KA['dbg']}")
    A("v_lshrrev_b32 v1, 6, v0")
    A("v_and_b32 v2, 63, v0")
    A("v_readfirstlane_b32 s32, v1")
    A("s_and_b32 s3, s2, 7")
    A("s_lshr_b32 s33, s2, 3")
    A("s_and_b32 s34, s3, 1")
    A("s_lshl_b32 s34, s34, 2")
    A("s_and_b32 s35, s33, 3")
    A("s_add_u32 s34, s34, s35")
    A("s_lshr_b32 s35, s3, 1")
    A("s_lshl_b32 s35, s35, 2")
    A("s_bfe_u32 s3, s33, 0x20002")
    A("s_add_u32 s35, s35, s3")
    A("s_lshr_b32 s33, s33, 4")
    A("v_lshrrev_b32 v3, 3, v2")
    A("v_and_b32 v4, 7, v2")
    A("v_lshrrev_b32 v5, 1, v3")
    A("v_xor_b32 v4, v4, v5")
    A("v_lshlrev_b32 v4, 4, v4")
    A("v_and_b32 v6, 15, v2")
    A("v_lshrrev_b32 v7, 4, v2")
    A("v_lshrrev_b32 v8, 1, v6")
    A("v_xor_b32 v8, v8, v7")
    A("v_lshlrev_b32 v8, 4, v8")
    A("v_lshl_add_u32 v8, v6, 7, v8")
    A("s_lshr_b32 s60, s32, 1")
    A("s_and_b32 s61, s32, 1")
    A("s_lshl_b32 s62, s60, 13")
    A("v_add_u32 v104, s62, v8")
    A("v_xor_b32 v105, 64, v104")
    A(f"v_add_u32 v106, {SLOT1}, v104")
    A(f"v_add_u32 v107, {SLOT1}, v105")
    A("s_lshl_b32 s29, s32, 12")
    A("s_waitcnt lgkmcnt(0)")
    srd(A, 12, 58, H_BYTES, WS_H)
    stamp(A, 0, 58)
    A("s_cmp_eq_u32 s33, 0")
    A("s_cbranch_scc1 s1_ssm")
    gen_s1_mlp(A)
    A.label("s1_ssm")
    gen_s1_ssm(A)
    A.label("s1_done")
    A("s_endpgm")

def s1_mainloop(A, tag, reads, mfmas, dma, nk=16):
    if "nomfma" in EXP:
        mfmas = lambda st: ["s_nop 0"] * 16
    if "nodma" in EXP:
        dma = lambda slot: []
    if "noread" in EXP:
        reads = lambda a, b, c: []
    def half_a(slot):
        A("s_waitcnt lgkmcnt(0)")
        for x in interleave(mfmas(0), [[r] for r in reads(1, slot, 1)]):
            A(x)
        A("s_waitcnt vmcnt(0) lgkmcnt(0)")
        A("s_barrier")
    def half_b(slot, do_dma, do_read):
        side = []
        rd = [[r] for r in reads(0, slot ^ 1, 0)] if do_read else []
        dm = dma(slot) if do_dma else []
        while rd or dm:
            if rd: side.append(rd.pop(0))
            if rd: side.append(rd.pop(0))
            if dm: side.append(dm.pop(0))
        for x in interleave(mfmas(1), side):
            A(x)
    A(f"s_mov_b32 s31, {nk//2 - 1}")
    A.label(f"{tag}_loop")
    half_a(0); half_b(0, True, True)
    half_a(1); half_b(1, True, True)
    A("s_sub_u32 s31, s31, 1")
    A("s_cmp_lg_u32 s31, 0")
    A(f"s_cbranch_scc1 {tag}_loop")
    half_a(0); half_b(0, False, True)
    half_a(1); half_b(1, False, False)

def gen_s1_mlp(A):
    A.comment("---------------- MLP-up role ----------------")
    srd(A, 4, 58, 4 << 20, WS_Y)
    srd(A, 8, 52, 1024 * 7168)
    srd(A, 16, 54, 7168)
    A("v_lshl_add_u32 v112, v3, 11, v4")
    A("v_xor_b32 v113, 64, v112")
    A("s_lshl_b32 s20, s34, 8")
    A("s_lshl_b32 s63, s32, 5")
    A("s_add_u32 s20, s20, s63")
    A("s_lshl_b32 s20, s20, 11")
    for q in range(1, 4):
        A(f"s_add_u32 s{20+q}, s20, {q*8*2048}")
    A("v_lshrrev_b32 v9, 2, v2")
    A("v_and_b32 v10, 3, v2")
    A("v_lshrrev_b32 v11, 5, v2")
    A("v_lshlrev_b32 v11, 1, v11")
    A("v_xor_b32 v10, v10, v11")
    A("v_lshlrev_b32 v10, 4, v10")
    A("s_movk_i32 s63, 7168")
    A("v_mul_lo_u32 v9, v9, s63")
    A("v_add_u32 v114, v9, v10")
    A("s_mul_i32 s24, s60, 16*7168")
    A("s_mul_i32 s64, s35, 448")
    A("s_add_u32 s24, s24, s64")
    A("s_lshl_b32 s63, s61, 8")
    A("s_add_u32 s24, s24, s63")
    for q in range(1, 4):
        A(f"s_add_u32 s{24+q}, s24, {q*64}")
    A("s_mul_i32 s30, s60, 7")
    A("s_lshl_b32 s63, s61, 2")
    A("s_add_u32 s30, s30, s63")
    A("s_lshl_b32 s30, s30, 10")
    A(f"s_add_u32 s30, s30, {BOFF1}")
    A("s_mov_b32 s28, 64*7168")
    def dma(slot):
        g = []
        for q in range(4):
            g.append([f"s_add_u32 m0, s29, {slot*SLOT1 + q*1024}", "s_nop 0",
                      f"buffer_load_dwordx4 v{112 + (q & 1)}, s[4:7], s{20+q} offen lds"])
        for q in range(3):
            g.append([f"s_add_u32 m0, s30, {slot*SLOT1 + q*1024}", "s_nop 0",
                      f"buffer_load_dwordx4 v114, s[8:11], s{24+q} offen lds"])
        lab = A.newlabel("mlp_skip")
        g.append(["s_cmp_lg_u32 s61, 0", f"s_cbranch_scc1 {lab}",
                  f"s_add_u32 m0, s30, {slot*SLOT1 + 3*1024}", "s_nop 0",
                  f"buffer_load_dwordx4 v114, s[8:11], s27 offen lds", f"{lab}:"])
        g.append(["v_add_u32 v112, 128, v112", "v_add_u32 v113, 128, v113", "v_add_u32 v114, s28, v114"])
        return g
    for slot in range(2):
        for g in dma(slot):
            for x in g: A(x)
    A("v_lshrrev_b32 v9, 1, v7")
    A("s_movk_i32 s63, 7168")
    A("v_mul_lo_u32 v9, v9, s63")
    A("v_and_b32 v10, 1, v7")
    A("v_lshrrev_b32 v11, 2, v6")
    A("v_lshl_add_u32 v11, v10, 3, v11")
    A("v_lshl_add_u32 v9, v11, 6, v9")
    A("v_and_b32 v11, 3, v6")
    A("v_lshl_add_u32 v9, v11, 3, v9")
    A("v_lshl_add_u32 v9, v10, 5, v9")
    A("s_lshl_b32 s63, s61, 5")
    A("v_xor_b32 v108, s63, v9")
    A("v_xor_b32 v109, 32, v108")
    A("s_mul_i32 s63, s61, 3072")
    A(f"s_add_u32 s63, s63, {BOFF1}")
    A("v_add_u32 v108, s63, v108")
    A("s_lshl_b32 s63, s61, 12")
    A(f"s_add_u32 s63, s63, {BOFF1}")
    A("v_add_u32 v109, s63, v109")
    A(f"v_add_u32 v110, {SLOT1}, v108")
    A(f"v_add_u32 v111, {SLOT1}, v109")
    A("s_mul_i32 s63, s61, 224")
    A("s_add_u32 s63, s63, s64")
    A("v_lshlrev_b32 v9, 3, v7")
    for t in range(7):
        A(f"buffer_load_dwordx2 v[{16+2*t}:{17+2*t}], v9, s[16:19], s63 offen offset:{32*t}")
    ACC = 128
    def acc(t, i): return ACC + (t * 4 + i) * 4
    A("s_mov_b32 s65, 0xffff0000")
    A("s_waitcnt vmcnt(0)")
    for t in range(7):
        a = acc(t, 0)
        A(f"v_lshlrev_b32 v{a}, 16, v{16+2*t}")
        A(f"v_and_b32 v{a+1}, s65, v{16+2*t}")
        A(f"v_lshlrev_b32 v{a+2}, 16, v{17+2*t}")
        A(f"v_and_b32 v{a+3}, s65, v{17+2*t}")
        for i in range(1, 4):
            for r in range(4):
                A(f"v_mov_b32 v{acc(t,i)+r}, v{a+r}")
    YF = [16, 60]; WF = [32, 76]
    def reads(st, slot, sub):
        out = []
        for t in range(7):
            base = 108 + 2 * slot + (t & 1)
            off = (2 * sub * 7 + (t >> 1)) * 1024
            d = WF[st] + 4 * t
            out.append(f"ds_read_b64_tr_b16 v[{d}:{d+1}], v{base} offset:{off}")
            out.append(f"ds_read_b64_tr_b16 v[{d+2}:{d+3}], v{base} offset:{off+256}")
            if t < 4:
                y = YF[st] + 4 * t
                out.append(f"ds_read_b128 v[{y}:{y+3}], v{104 + 2*slot + sub} offset:{t*2048}")
        return out
    def mfmas(st):
        out = []
        for t in range(7):
            for i in range(4):
                a = acc(t, i)
                out.append(f"v_mfma_f32_16x16x32_bf16 v[{a}:{a+3}], v[{WF[st]+4*t}:{WF[st]+4*t+3}], v[{YF[st]+4*i}:{YF[st]+4*i+3}], v[{a}:{a+3}]")
        return out
    A("s_barrier")
    stamp(A, 1, 58)
    for x in reads(0, 0, 0): A(x)
    s1_mainloop(A, "mlp", reads, mfmas, dma)
    stamp(A, 2, 58)
    A("s_nop 7"); A("s_nop 7")
    A("s_movk_i32 s63, 11264")
    A("v_mul_lo_u32 v9, v6, s63")
    A("v_lshl_add_u32 v9, v7, 3, v9")
    A("s_lshl_b32 s66, s34, 8")
    A("s_lshl_b32 s67, s60, 6")
    A("s_add_u32 s66, s66, s67")
    A("s_mul_i32 s66, s66, 11264")
    A("s_mul_i32 s67, s61, 224")
    A("s_add_u32 s66, s66, s67")
    A("s_add_u32 s66, s66, s64")
    A(f"s_mov_b32 s68, {f32(-2.302208198)}")
    A(f"s_mov_b32 s69, {f32(-2.302208198*0.044715)}")
    A("v_mov_b32 v10, s68")
    for i in range(4):
        for t in range(7):
            a = acc(t, i)
            T = 16 + 8 * ((i * 7 + t) % 4)
            for r in range(4): A(f"v_mul_f32 v{T+r}, v{a+r}, v{a+r}")
            for r in range(4): A(f"v_fma_f32 v{T+r}, v{T+r}, s69, v10")
            for r in range(4): A(f"v_mul_f32 v{T+r}, v{T+r}, v{a+r}")
            for r in range(4): A(f"v_exp_f32 v{T+r}, v{T+r}")
            for r in range(4): A(f"v_add_f32 v{T+r}, 1.0, v{T+r}")
            for r in range(4): A(f"v_rcp_f32 v{T+r}, v{T+r}")
            for r in range(4): A(f"v_mul_f32 v{T+r}, v{T+r}, v{a+r}")
            A(f"v_cvt_pk_bf16_f32 v{T+4}, v{T}, v{T+1}")
            A(f"v_cvt_pk_bf16_f32 v{T+5}, v{T+2}, v{T+3}")
            A(f"buffer_store_dwordx2 v[{T+4}:{T+5}], v9, s[12:15], s66 offen offset:{32*t}")
        if i < 3:
            A(f"s_add_u32 s66, s66, {16*11264}")
    stamp(A, 3, 58)
    A("s_waitcnt vmcnt(0)")
    stamp(A, 4, 58)
    A("s_endpgm")

def gen_s1_ssm(A):
    A.comment("---------------- SSM role ----------------")
    srd(A, 4, 36, 4 << 20)
    A("s_cmp_lt_u32 s32, 4")
    A("s_cselect_b32 s8, s44, s46")
    A("s_cselect_b32 s9, s45, s47")
    A("s_mov_b32 s10, 0x200000")
    A("s_mov_b32 s11, 0x00020000")
    A("v_lshrrev_b32 v9, 2, v3")
    A("v_and_b32 v10, 3, v3")
    A("v_lshl_add_u32 v9, v9, 4, v10")
    A("v_lshl_add_u32 v112, v9, 11, v4")
    A("v_xor_b32 v113, 64, v112")
    A("s_lshl_b32 s20, s34, 8")
    A("s_lshl_b32 s63, s60, 6")
    A("s_add_u32 s20, s20, s63")
    A("s_lshl_b32 s63, s61, 3")
    A("s_add_u32 s20, s20, s63")
    A("s_lshl_b32 s20, s20, 11")
    for q in range(1, 4):
        A(f"s_add_u32 s{20+q}, s20, {(32*(q&1) + 4*(q>>1))*2048}")
    A("v_lshl_add_u32 v114, v3, 12, v4")
    A("v_xor_b32 v115, 64, v114")
    A("s_lshl_b32 s64, s35, 6")
    A("s_and_b32 s63, s60, 1")
    A("s_lshl_b32 s63, s63, 5")
    A("s_add_u32 s24, s64, s63")
    A("s_add_u32 s24, s24, s61")
    A("s_lshl_b32 s24, s24, 11")
    A(f"s_add_u32 s25, s24, {16*2048}")
    A("s_lshl_b32 s30, s32, 11")
    A(f"s_add_u32 s30, s30, {BOFF1}")
    def dma(slot):
        g = []
        for q in range(4):
            g.append([f"s_add_u32 m0, s29, {slot*SLOT1 + q*1024}", "s_nop 0",
                      f"buffer_load_dwordx4 v{112 + (q & 1)}, s[4:7], s{20+q} offen lds"])
        for q in range(2):
            g.append([f"s_add_u32 m0, s30, {slot*SLOT1 + q*1024}", "s_nop 0",
                      f"buffer_load_dwordx4 v{114+q}, s[8:11], s{24+q} offen lds"])
        g.append([f"v_add_u32 v{112+j}, 128, v{112+j}" for j in range(4)])
        return g
    for slot in range(2):
        for g in dma(slot):
            for x in g: A(x)
    A("s_lshl_b32 s63, s61, 12")
    A(f"s_add_u32 s63, s63, {BOFF1}")
    A("v_add_u32 v108, s63, v8")
    A("v_xor_b32 v109, 64, v108")
    A(f"v_add_u32 v110, {SLOT1}, v108")
    A(f"v_add_u32 v111, {SLOT1}, v109")
    srd(A, 68, 40, 2048); srd(A, 72, 42, 2048); srd(A, 76, 48, 2048)
    A("s_lshl_b32 s63, s61, 5")
    A("s_add_u32 s63, s63, s64")
    A("s_lshl_b32 s63, s63, 1")
    A("v_lshlrev_b32 v9, 2, v6")
    A("buffer_load_dword v16, v9, s[68:71], s63 offen")
    A("buffer_load_dword v17, v9, s[72:75], s63 offen")
    A("buffer_load_dword v18, v9, s[76:79], s63 offen")
    A("s_lshl_b32 s63, s64, 1")
    A("v_lshlrev_b32 v9, 1, v2")
    A("buffer_load_ushort v19, v9, s[68:71], s63 offen")
    A("buffer_load_ushort v20, v9, s[72:75], s63 offen")
    A("buffer_load_ushort v21, v9, s[76:79], s63 offen")
    ACC = 128
    def acc(c, p, i): return ACC + ((c * 2 + p) * 4 + i) * 4
    for r in range(64):
        A(f"v_mov_b32 v{ACC+r}, 0")
    A("s_mov_b32 s65, 0xffff0000")
    A("s_waitcnt vmcnt(0)")
    CST = 200
    for c in range(2):
        for k in range(3):
            if c == 0: A(f"v_lshlrev_b32 v{22+k}, 16, v{16+k}")
            else:      A(f"v_and_b32 v{22+k}, s65, v{16+k}")
        lam_consts(A, 24, 22, 23, [CST+4*c, CST+4*c+1, CST+4*c+2, CST+4*c+3], [26, 27, 28, 29, 30, 31])
    for k in range(3):
        A(f"v_lshlrev_b32 v{22+k}, 16, v{19+k}")
    lam_consts(A, 24, 22, 23, [208, 209, None, None], [26, 27, 28, 29, 30, 31])
    for _ in range(4): csquare(A, 208, 209, 26)
    A("v_mov_b32 v210, v208"); A("v_mov_b32 v211, v209")
    for _ in range(4): csquare(A, 210, 211, 26)
    XF = [16, 48]; BF = [32, 64]
    def reads(st, slot, sub):
        out = []
        for i in range(4):
            x = XF[st] + 4 * i
            out.append(f"ds_read_b128 v[{x}:{x+3}], v{104 + 2*slot + sub} offset:{i*2048}")
            c, p = i >> 1, i & 1
            b = BF[st] + 4 * (c * 2 + p)
            out.append(f"ds_read_b128 v[{b}:{b+3}], v{108 + 2*slot + sub} offset:{(64*p + 16*c)*128}")
        return out
    def mfmas(st):
        out = []
        for c in range(2):
            for p in range(2):
                for i in range(4):
                    a = acc(c, p, i); b = BF[st] + 4 * (c * 2 + p); x = XF[st] + 4 * i
                    out.append(f"v_mfma_f32_16x16x32_bf16 v[{a}:{a+3}], v[{x}:{x+3}], v[{b}:{b+3}], v[{a}:{a+3}]")
        return out
    A("s_barrier")
    stamp(A, 1, 58)
    for x in reads(0, 0, 0): A(x)
    s1_mainloop(A, "ssm", reads, mfmas, dma)
    stamp(A, 2, 58)
    A("s_nop 7"); A("s_nop 7")
    def el(c, p, tau): return acc(c, p, tau >> 2) + (tau & 3)
    for tau in range(16):
        for c in range(2):
            cr, ci = CST + 4*c + 2, CST + 4*c + 3
            ur, ui = el(c, 0, tau), el(c, 1, tau)
            t0, t1 = 16 + 2*c, 17 + 2*c
            A(f"v_mul_f32 v{t0}, v{ci}, v{ui}")
            A(f"v_mul_f32 v{t1}, v{ci}, v{ur}")
            A(f"v_fma_f32 v{ur}, v{cr}, v{ur}, -v{t0}")
            A(f"v_fma_f32 v{ui}, v{cr}, v{ui}, v{t1}")
    def step(src, dst, tau):
        ins = [[], []]
        for c in range(2):
            lr, li = CST + 4*c, CST + 4*c + 1
            ur, ui = el(c, 0, tau), el(c, 1, tau)
            er, ei = src + 2*c, src + 2*c + 1
            dr, di = dst[c]
            A(f"v_fma_f32 v{28+2*c}, v{lr}, v{er}, v{ur}")
            A(f"v_fma_f32 v{29+2*c}, v{lr}, v{ei}, v{ui}")
        for c in range(2):
            lr, li = CST + 4*c, CST + 4*c + 1
            er, ei = src + 2*c, src + 2*c + 1
            dr, di = dst[c]
            A(f"v_fma_f32 v{dr}, -v{li}, v{ei}, v{28+2*c}")
            A(f"v_fma_f32 v{di}, v{li}, v{er}, v{29+2*c}")
    for c in range(2):
        A(f"v_mov_b32 v{24+2*c}, v{el(c,0,0)}")
        A(f"v_mov_b32 v{25+2*c}, v{el(c,1,0)}")
    cur = 24
    for tau in range(1, 16):
        nxt = 44 - cur
        step(cur, [(nxt, nxt+1), (nxt+2, nxt+3)], tau)
        cur = nxt
    assert cur == 20
    A("s_barrier")
    A("s_lshl_b32 s63, s60, 11")
    A("s_lshl_b32 s66, s61, 8")
    A("s_add_u32 s63, s63, s66")
    A("v_lshlrev_b32 v9, 9, v7")
    A("v_lshl_add_u32 v9, v6, 4, v9")
    A("v_add_u32 v9, s63, v9")
    A("ds_write_b128 v9, v[20:23]")
    A("s_waitcnt lgkmcnt(0)")
    A("s_barrier")
    A("s_cmp_lg_u32 s32, 0")
    A("s_cbranch_scc1 ssm_wait")
    A("v_lshlrev_b32 v10, 3, v2")
    for s in range(16):
        A(f"ds_read_b64 v[{32+2*s}:{33+2*s}], v10 offset:{s*512}")
    srd(A, 68, 58, 65536, WS_E)
    srd(A, 72, 56, 256)
    A("s_waitcnt lgkmcnt(0)")
    def cstep(er, ei, mr, mi, ur, ui):
        A(f"v_fma_f32 v28, v{mr}, v{er}, v{ur}")
        A(f"v_fma_f32 v29, v{mr}, v{ei}, v{ui}")
        A(f"v_fma_f32 v28, -v{mi}, v{ei}, v28")
        A(f"v_fma_f32 v{ei}, v{mi}, v{er}, v29")
        A(f"v_mov_b32 v{er}, v28")
    A("v_mov_b32 v24, v32"); A("v_mov_b32 v25, v33")
    for s in range(1, 16):
        cstep(24, 25, 208, 209, 32+2*s, 33+2*s)
    A("s_lshl_b32 s63, s34, 13")
    A("s_lshl_b32 s66, s35, 9")
    A("s_add_u32 s63, s63, s66")
    A("buffer_store_dwordx2 v[24:25], v10, s[68:71], s63 offen sc0 sc1")
    A("s_waitcnt vmcnt(0)")
    A("s_lshl_b32 s67, 1, s34")
    A("v_mov_b32 v11, s67")
    A("s_lshl_b32 s80, s35, 2")
    A("v_mov_b32 v12, 0")
    A("s_mov_b64 s[82:83], exec")
    A("s_mov_b64 exec, 1")
    A("buffer_atomic_or v11, v12, s[72:75], s80 offen sc1")
    A("s_mov_b64 exec, s[82:83]")
    A("s_sub_u32 s67, s67, 1")
    A("v_mov_b32 v24, 0"); A("v_mov_b32 v25, 0")
    A("s_cmp_eq_u32 s34, 0")
    A("s_cbranch_scc1 ssm_nolook")
    A("s_mov_b32 s81, 0x100000")
    A.label("ssm_poll")
    A("buffer_load_dword v13, v12, s[72:75], s80 offen sc0 sc1")
    A("s_waitcnt vmcnt(0)")
    A("v_readfirstlane_b32 s84, v13")
    A("s_and_b32 s84, s84, s67")
    A("s_cmp_eq_u32 s84, s67")
    A("s_cbranch_scc1 ssm_ready")
    A("s_sleep 2")
    A("s_sub_u32 s81, s81, 1")
    A("s_cmp_lg_u32 s81, 0")
    A("s_cbranch_scc1 ssm_poll")
    A.label("ssm_ready")
    for cc in range(7):
        if cc:
            A(f"s_cmp_le_u32 s34, {cc}")
            A("s_cbranch_scc1 ssm_loaded")
        A(f"s_add_u32 s84, s66, {cc*8192}")
        A(f"buffer_load_dwordx2 v[{64+2*cc}:{65+2*cc}], v10, s[68:71], s84 offen sc0 sc1")
    A.label("ssm_loaded")
    A("s_waitcnt vmcnt(0)")
    for cc in range(7):
        A(f"s_cmp_le_u32 s34, {cc}")
        A("s_cbranch_scc1 ssm_nolook")
        cstep(24, 25, 210, 211, 64+2*cc, 65+2*cc)
    A.label("ssm_nolook")
    for s in range(16):
        A(f"ds_write_b64 v10, v[24:25] offset:{8192 + s*512}")
        if s < 15:
            cstep(24, 25, 208, 209, 32+2*s, 33+2*s)
    A("s_waitcnt lgkmcnt(0)")
    A.label("ssm_wait")
    A("s_barrier")
    stamp(A, 3, 58)
    A("ds_read_b128 v[20:23], v9 offset:8192")
    A("s_mov_b32 s63, 16*11264")
    A("v_mul_lo_u32 v10, v7, s63")
    A("v_lshl_add_u32 v10, v6, 2, v10")
    A("s_lshl_b32 s66, s34, 8")
    A("s_lshl_b32 s67, s60, 6")
    A("s_add_u32 s66, s66, s67")
    A("s_mul_i32 s66, s66, 11264")
    A("s_lshl_b32 s67, s61, 6")
    A("s_add_u32 s66, s66, s67")
    A("s_lshl_b32 s67, s64, 1")
    A("s_add_u32 s66, s66, s67")
    A(f"s_add_u32 s66, s66, {3584*2}")
    A("s_waitcnt lgkmcnt(0)")
    cur = 20
    for tau in range(16):
        nxt = 44 - cur
        step(cur, [(nxt, nxt+1), (nxt+2, nxt+3)], tau)
        cur = nxt
        o = 32 + 2 * (tau % 8)
        A(f"v_cvt_pk_bf16_f32 v{o}, v{cur}, v{cur+2}")
        A(f"v_cvt_pk_bf16_f32 v{o+1}, -v{cur+1}, -v{cur+3}")
        A(f"buffer_store_dword v{o}, v10, s[12:15], s66 offen")
        A(f"buffer_store_dword v{o+1}, v10, s[12:15], s66 offen offset:2048")
        if tau < 15:
            A(f"s_add_u32 s66, s66, 11264")
    stamp(A, 4, 58)
    A("s_waitcnt vmcnt(0)")
    stamp(A, 5, 58)

def main():
    hdr = open("cdna_kernels/" + NAME + ".s.ref").read().split("; Override launch")[0]
    A = Asm()
    gen_pre(A)
    gen_s1(A)
    launches = [("pre_kernel", 512, 256, 0), ("s1_kernel", 256, 512, 2 * SLOT1)]
    kds = [kd("pre_kernel", 56, 40), kd("s1_kernel", 256 if "stamp" in EXP else 240, 100)]
    try:
        import gen2
        gen2.gen_s2(A)
        launches.append(("s2_kernel", 256, 512, gen2.LDS))
        kds.append(kd("s2_kernel", gen2.VGPR, 96))
    except ImportError:
        pass
    out = hdr
    for n, g, b, l in launches:
        out += f"; @launch kernel={n} grid=({g},1,1) block=({b},1,1) lds={l}\n"
    out += '.amdgcn_target "amdgcn-amd-amdhsa--gfx950"\n.text\n'
    out += A.text()
    out += '.section .rodata,"a"\n'
    for k in kds:
        out += ".p2align 6\n" + k
    dst = sys.argv[1] if len(sys.argv) > 1 else "cdna_kernels/" + NAME + ".s"
    open(dst, "w").write(out)

if __name__ == "__main__":
    main()
```

```python
import os
from gen import *
NS = 4
SLOT = 32768
BOFF = 16384
LDS = NS * SLOT
VGPR = 256 if "stamp" in EXP else 232
KP = int(os.environ.get("KP", "48"))
ACC = 128
STASH = 64
YF = [192, 208]
WF = [16, 32]

def acc(t, i): return ACC + (t * 4 + i) * 4

def gen_s2(A):
    kernel_head(A, "s2_kernel")
    A("s_cmp_ge_u32 s2, 256")
    A("s_cbranch_scc1 s2_done")
    if "s2half" in EXP:
        A("s_bitcmp1_b32 s2, 3")
        A("s_cbranch_scc1 s2_done")
    if "s2quart" in EXP:
        A("s_and_b32 s3, s2, 0x18")
        A("s_cbranch_scc1 s2_done")
    A(f"s_load_dwordx2 s[36:37], s[0:1], {KA['x']}")
    A(f"s_load_dwordx4 s[40:43], s[0:1], {KA['cre']}")
    A(f"s_load_dwordx2 s[44:45], s[0:1], {KA['dskip']}")
    A(f"s_load_dwordx4 s[48:51], s[0:1], {KA['w2']}")
    A(f"s_load_dwordx2 s[52:53], s[0:1], {KA['out']}")
    A(f"s_load_dwordx4 s[56:59], s[0:1], {KA['dbg']}")
    A("v_lshrrev_b32 v1, 6, v0")
    A("v_and_b32 v2, 63, v0")
    A("v_readfirstlane_b32 s32, v1")
    A("s_and_b32 s3, s2, 7")
    A("s_lshr_b32 s33, s2, 3")
    A("s_and_b32 s34, s3, 1")
    A("s_lshl_b32 s34, s34, 3")
    A("s_and_b32 s35, s33, 7")
    A("s_add_u32 s34, s34, s35")
    A("s_bfe_u32 s35, s3, 0x10001")
    A("s_lshl_b32 s35, s35, 2")
    A("s_lshr_b32 s33, s33, 3")
    A("s_add_u32 s35, s35, s33")
    A("s_lshr_b32 s33, s3, 2")
    A("v_lshrrev_b32 v3, 3, v2")
    A("v_and_b32 v4, 7, v2")
    A("v_lshrrev_b32 v5, 1, v3")
    A("v_xor_b32 v4, v4, v5")
    A("v_lshlrev_b32 v4, 4, v4")
    A("v_and_b32 v6, 15, v2")
    A("v_lshrrev_b32 v7, 4, v2")
    A("v_lshrrev_b32 v8, 1, v6")
    A("v_xor_b32 v8, v8, v7")
    A("v_lshlrev_b32 v8, 4, v8")
    A("v_lshl_add_u32 v8, v6, 7, v8")
    A("s_lshr_b32 s62, s32, 2")
    A("s_bfe_u32 s60, s32, 0x10001")
    A("s_and_b32 s61, s32, 1")
    A("s_lshl_b32 s63, s62, 6")
    A("v_xor_b32 v8, s63, v8")
    A("s_lshl_b32 s63, s60, 13")
    A("v_add_u32 v48, s63, v8")
    A(f"v_add_u32 v49, {2*SLOT}, v48")
    A("s_lshl_b32 s63, s61, 13")
    A(f"s_add_u32 s63, s63, {BOFF}")
    A("v_add_u32 v50, s63, v8")
    A(f"v_add_u32 v51, {2*SLOT}, v50")
    A("v_lshrrev_b32 v9, 1, v7")
    A("v_lshlrev_b32 v9, 12, v9")
    A("v_and_b32 v10, 1, v7")
    A("v_lshrrev_b32 v11, 2, v6")
    A("v_lshl_add_u32 v11, v10, 3, v11")
    A("v_lshl_add_u32 v9, v11, 6, v9")
    A("v_and_b32 v11, 3, v6")
    A("v_lshl_add_u32 v9, v11, 3, v9")
    A("v_lshl_add_u32 v9, v10, 5, v9")
    A("s_lshl_b32 s63, s62, 13")
    A("s_lshl_b32 s64, s61, 11")
    A("s_add_u32 s63, s63, s64")
    A(f"s_add_u32 s63, s63, {BOFF}")
    A("v_add_u32 v52, s63, v9")
    A("v_xor_b32 v53, 32, v52")
    A(f"v_add_u32 v54, {2*SLOT}, v52")
    A(f"v_add_u32 v55, {2*SLOT}, v53")
    A(f"s_movk_i32 s63, {HP}")
    A("v_mul_lo_u32 v9, v3, s63")
    A("v_add_u32 v56, v9, v4")
    A("v_xor_b32 v57, 64, v56")
    A("s_lshl_b32 s20, s34, 7")
    A("s_lshl_b32 s63, s32, 4")
    A("s_add_u32 s20, s20, s63")
    A(f"s_mul_i32 s20, s20, {HP}")
    A("s_lshl_b32 s29, s32, 11")
    A(f"s_add_u32 s30, s29, {BOFF}")
    A("v_lshrrev_b32 v9, 2, v2")
    A("v_and_b32 v10, 3, v2")
    A("v_lshrrev_b32 v11, 5, v2")
    A("v_lshlrev_b32 v11, 1, v11")
    A("v_xor_b32 v10, v10, v11")
    A("v_lshlrev_b32 v10, 4, v10")
    A("v_lshl_add_u32 v60, v9, 11, v10")
    A("v_lshl_add_u32 v58, v3, 11, v4")
    A("v_xor_b32 v59, 64, v58")
    A("s_waitcnt lgkmcnt(0)")
    srd(A, 4, 58, H_BYTES, WS_H)
    srd(A, 12, 48, 3584 * 2048)
    srd(A, 16, 58, 8192, WS_G)
    srd(A, 68, 58, 8 << 20, WS_T)
    srd(A, 72, 56, 256)
    stamp(A, 0, 58, 1)
    A("s_lshl_b32 s63, s34, 7")
    A("s_lshl_b32 s64, s60, 6")
    A("s_add_u32 s65, s63, s64")
    A("s_lshl_b32 s63, s65, 2")
    A("v_lshlrev_b32 v9, 2, v6")
    for i in range(4):
        A(f"buffer_load_dword v{12+i}, v9, s[16:19], s63 offen offset:{64*i}")
    for r in range(64):
        A(f"v_mov_b32 v{ACC+r}, 0")
    A("s_lshr_b32 s63, s32, 1")
    A("s_lshl_b32 s24, s63, 15")
    A("s_lshl_b32 s63, s35, 8")
    A("s_add_u32 s24, s24, s63")
    A("s_lshl_b32 s63, s61, 7")
    A("s_add_u32 s24, s24, s63")
    A("s_cmp_eq_u32 s33, 0")
    A("s_cbranch_scc1 s2_wphase_p")

    A(f"s_add_u32 s21, s20, {3584*2}")
    A(f"s_add_u32 s22, s21, {8*HP}")
    A("s_lshl_b32 s26, s35, 7")
    A("s_lshl_b32 s63, s32, 4")
    A("s_add_u32 s26, s26, s63")
    A("s_lshl_b32 s26, s26, 11")
    A(f"s_add_u32 s27, s26, {8*2048}")
    srd(A, 8, 40, 2 << 20)
    def dma_c(slot):
        return [[f"s_add_u32 m0, s29, {slot*SLOT}", "s_nop 0", "buffer_load_dwordx4 v56, s[4:7], s21 offen lds"],
                [f"s_add_u32 m0, s29, {slot*SLOT+1024}", "s_add_u32 s21, s21, 128", "buffer_load_dwordx4 v57, s[4:7], s22 offen lds"],
                [f"s_add_u32 m0, s30, {slot*SLOT}", "s_add_u32 s22, s22, 128", "buffer_load_dwordx4 v58, s[8:11], s26 offen lds"],
                [f"s_add_u32 m0, s30, {slot*SLOT+1024}", "s_add_u32 s26, s26, 128", "buffer_load_dwordx4 v59, s[8:11], s27 offen lds", "s_add_u32 s27, s27, 128"]]
    def reads_c(st, slot):
        out = []
        for t in range(4):
            w = WF[st] + 4 * t; y = YF[st] + 4 * t
            o = (slot & 1) * SLOT + t * 2048
            out.append(f"ds_read_b128 v[{w}:{w+3}], v{50 + (slot >> 1)} offset:{o}")
            out.append(f"ds_read_b128 v[{y}:{y+3}], v{48 + (slot >> 1)} offset:{o}")
        return out
    def switch_c():
        return ["s_cmp_eq_u32 s31, %d" % SWB[0], "s_cselect_b32 s8, s42, s8", "s_cselect_b32 s9, s43, s9",
                "s_cselect_b32 s63, 2048, 0", "s_sub_u32 s26, s26, s63", "s_sub_u32 s27, s27, s63"]
    SWB = [0]
    nt_c = 32
    nbody = nt_c // 4 - 1
    SWB[0] = nbody - 3
    mainloop(A, "s2c", reads_c, dma_c, nt_c, switch_c)
    A("s_nop 7"); A("s_nop 7")
    for i in range(4):
        A(f"v_add_f32 v{8+i}, v{12+i}, v{12+i}")
    for t in range(4):
        for i in range(4):
            for r in range(4):
                A(f"v_mul_f32 v{STASH + (t*4+i)*4 + r}, v{8+i}, v{acc(t,i)+r}")
    for r in range(64):
        A(f"v_mov_b32 v{ACC+r}, 0")
    A("s_barrier")
    A(f"s_add_u32 s21, s20, {KP*128}")
    A(f"s_add_u32 s24, s24, {KP*64*2048}")
    A(f"s_mov_b32 s66, {(56-KP)//4 - 1}")
    A("s_branch s2_wphase")
    A.label("s2_wphase_p")
    A("s_mov_b32 s21, s20")
    A(f"s_mov_b32 s66, {KP//4 - 1}")
    A.label("s2_wphase")
    A(f"s_add_u32 s22, s21, {8*HP}")
    A("s_add_u32 s25, s24, 64")
    def dma_w(slot):
        return [[f"s_add_u32 m0, s29, {slot*SLOT}", "s_nop 0", "buffer_load_dwordx4 v56, s[4:7], s21 offen lds"],
                [f"s_add_u32 m0, s29, {slot*SLOT+1024}", "s_add_u32 s21, s21, 128", "buffer_load_dwordx4 v57, s[4:7], s22 offen lds"],
                [f"s_add_u32 m0, s30, {slot*SLOT}", "s_add_u32 s22, s22, 128", "buffer_load_dwordx4 v60, s[12:15], s24 offen lds"],
                [f"s_add_u32 m0, s30, {slot*SLOT+1024}", f"s_add_u32 s24, s24, {64*2048}", "buffer_load_dwordx4 v60, s[12:15], s25 offen lds", f"s_add_u32 s25, s25, {64*2048}"]]
    def reads_w(st, slot):
        out = []
        for t in range(4):
            w = WF[st] + 4 * t; y = YF[st] + 4 * t
            o = (slot & 1) * SLOT + (t >> 1) * 1024
            b = 52 + 2 * (slot >> 1) + (t & 1)
            out.append(f"ds_read_b64_tr_b16 v[{w}:{w+1}], v{b} offset:{o}")
            out.append(f"ds_read_b64_tr_b16 v[{w+2}:{w+3}], v{b} offset:{o+256}")
            out.append(f"ds_read_b128 v[{y}:{y+3}], v{48 + (slot >> 1)} offset:{(slot & 1) * SLOT + t * 2048}")
        return out
    stamp(A, 1, 58, 1)
    mainloop(A, "s2w", reads_w, dma_w, None, None, cntreg="s66")
    stamp(A, 2, 58, 1)
    A("s_nop 7"); A("s_nop 7")
    for i in range(4):
        A(f"v_sub_f32 v{8+i}, 1.0, v{12+i}")
        round_bf16(A, 8+i, 8+i)
    A("s_cmp_eq_u32 s33, 0")
    A("s_cbranch_scc1 s2_scale_p")
    for t in range(4):
        for i in range(4):
            for r in range(4):
                A(f"v_fma_f32 v{acc(t,i)+r}, v{8+i}, v{acc(t,i)+r}, v{STASH + (t*4+i)*4 + r}")
    A("s_branch s2_scaled")
    A.label("s2_scale_p")
    for t in range(4):
        for i in range(4):
            for r in range(4):
                A(f"v_mul_f32 v{acc(t,i)+r}, v{8+i}, v{acc(t,i)+r}")
    A.label("s2_scaled")
    A("s_barrier")
    A("s_lshl_b32 s63, s32, 13")
    A("v_lshlrev_b32 v9, 4, v2")
    A("v_add_u32 v10, s63, v9")
    A("s_xor_b32 s63, s63, 0x8000")
    A("v_add_u32 v11, s63, v9")
    A("s_cmp_eq_u32 s62, 0")
    A("s_cbranch_scc1 s2_red0")
    for t in range(4):
        for j in range(2):
            a = acc(t, j)
            A(f"ds_write_b128 v10, v[{a}:{a+3}] offset:{(t*2+j)*1024}")
    A("s_waitcnt lgkmcnt(0)")
    for t in range(4):
        for j in range(2):
            for r in range(4):
                A(f"v_mov_b32 v{acc(t,j)+r}, v{acc(t,2+j)+r}")
    A("v_mov_b32 v12, v14"); A("v_mov_b32 v13, v15")
    A("s_add_u32 s65, s65, 32")
    A("s_branch s2_red1")
    A.label("s2_red0")
    for t in range(4):
        for j in range(2):
            a = acc(t, 2 + j)
            A(f"ds_write_b128 v10, v[{a}:{a+3}] offset:{(t*2+j)*1024}")
    A("s_waitcnt lgkmcnt(0)")
    A.label("s2_red1")
    A("s_barrier")
    for t in range(4):
        for j in range(2):
            d = 64 + (t*2+j)*4
            A(f"ds_read_b128 v[{d}:{d+3}], v11 offset:{(t*2+j)*1024}")
    A("v_lshlrev_b32 v9, 12, v6")
    A("v_lshl_add_u32 v9, v7, 4, v9")
    A("s_lshl_b32 s63, s65, 12")
    A("s_lshl_b32 s64, s35, 9")
    A("s_add_u32 s63, s63, s64")
    A("s_lshl_b32 s64, s61, 8")
    A("s_add_u32 s63, s63, s64")
    A(f"s_add_u32 s64, s63, {16*4096}")
    A("s_lshl_b32 s80, s34, 3")
    A("s_add_u32 s80, s80, s35")
    A("s_and_b32 s81, s80, 1")
    A("s_lshl_b32 s81, 1, s81")
    A("s_lshr_b32 s80, s80, 1")
    A("s_lshl_b32 s80, s80, 2")
    A("v_mov_b32 v62, 0")
    A("s_waitcnt lgkmcnt(0)")
    for t in range(4):
        for j in range(2):
            for r in range(4):
                A(f"v_add_f32 v{acc(t,j)+r}, v{acc(t,j)+r}, v{64+(t*2+j)*4+r}")
    A("s_cmp_eq_u32 s33, 0")
    A("s_cbranch_scc1 s2_fin_p")
    srd(A, 8, 36, 4 << 20)
    srd(A, 12, 44, 2048)
    srd(A, 16, 50, 2048)
    A("v_lshrrev_b32 v10, 1, v9")
    A("s_lshr_b32 s82, s63, 1")
    A("s_lshr_b32 s83, s64, 1")
    A("v_lshlrev_b32 v11, 3, v7")
    A("s_lshl_b32 s84, s35, 8")
    A("s_lshl_b32 s85, s61, 7")
    A("s_add_u32 s84, s84, s85")
    for t in range(4):
        A(f"buffer_load_dwordx2 v[{64+2*t}:{65+2*t}], v11, s[12:15], s84 offen offset:{32*t}")
        A(f"buffer_load_dwordx2 v[{72+2*t}:{73+2*t}], v11, s[16:19], s84 offen offset:{32*t}")
        for j in range(2):
            d = 80 + (t*2+j)*2
            A(f"buffer_load_dwordx2 v[{d}:{d+1}], v10, s[8:11], s{82+j} offen offset:{32*t}")
    for j in range(2):
        A(f"v_sub_f32 v{14+j}, 1.0, v{12+j}")
        round_bf16(A, 14+j, 14+j)
    A("s_mov_b32 s86, 0xffff0000")
    A("s_waitcnt vmcnt(0)")
    def unp(d, s):
        A(f"v_lshlrev_b32 v{d}, 16, v{s}")
        A(f"v_and_b32 v{d+1}, s86, v{s}")
        A(f"v_lshlrev_b32 v{d+2}, 16, v{s+1}")
        A(f"v_and_b32 v{d+3}, s86, v{s+1}")
    for t in range(4):
        unp(96, 64+2*t)
        unp(100, 72+2*t)
        for j in range(2):
            unp(104, 80+(t*2+j)*2)
            for r in range(4): A(f"v_mul_f32 v{104+r}, v{104+r}, v{96+r}")
            A("v_cvt_pk_bf16_f32 v108, v104, v105")
            A("v_cvt_pk_bf16_f32 v109, v106, v107")
            unp(104, 108)
            a = acc(t, j)
            for r in range(4): A(f"v_fmac_f32 v{a+r}, v{12+j}, v{104+r}")
            for r in range(4): A(f"v_fmac_f32 v{a+r}, v{14+j}, v{100+r}")
            A(f"buffer_store_dwordx4 v[{a}:{a+3}], v9, s[68:71], s{63+j} offen offset:{64*t} sc0 sc1")
    A("s_waitcnt vmcnt(0)")
    A("s_barrier")
    A("s_cmp_lg_u32 s32, 0")
    A("s_cbranch_scc1 s2_done")
    A("v_mov_b32 v61, s81")
    A("s_mov_b64 exec, 1")
    A("buffer_atomic_or v61, v62, s[72:75], s80 offen sc1")
    stamp(A, 3, 58, 1)
    A("s_endpgm")
    A.label("s2_fin_p")
    srd(A, 8, 52, 8 << 20)
    A("s_cmp_lg_u32 s32, 0")
    A("s_cbranch_scc1 s2_pwait")
    A("s_mov_b32 s82, 0x100000")
    A.label("s2_poll")
    A("buffer_load_dword v61, v62, s[72:75], s80 offen sc0 sc1")
    A("s_waitcnt vmcnt(0)")
    A("v_readfirstlane_b32 s83, v61")
    A("s_and_b32 s83, s83, s81")
    A("s_cbranch_scc1 s2_pwait")
    A("s_sleep 2")
    A("s_sub_u32 s82, s82, 1")
    A("s_cmp_lg_u32 s82, 0")
    A("s_cbranch_scc1 s2_poll")
    A.label("s2_pwait")
    A("s_barrier")
    stamp(A, 3, 58, 1)
    for t in range(4):
        for j in range(2):
            d = 64 + (t*2+j)*4
            A(f"buffer_load_dwordx4 v[{d}:{d+3}], v9, s[68:71], s{63+j} offen offset:{64*t} sc0 sc1")
    n = 0
    for t in range(4):
        for j in range(2):
            d = 64 + (t*2+j)*4; a = acc(t, j)
            A(f"s_waitcnt vmcnt({7})" if True else "")
            break
        break
    k = 0
    for t in range(4):
        for j in range(2):
            d = 64 + (t*2+j)*4; a = acc(t, j)
            A(f"s_waitcnt vmcnt(7)")
            for r in range(4): A(f"v_add_f32 v{d+r}, v{d+r}, v{a+r}")
            A(f"buffer_store_dwordx4 v[{d}:{d+3}], v9, s[8:11], s{63+j} offen offset:{64*t}")
            k += 1
    stamp(A, 4, 58, 1)
    A.label("s2_done")
    A("s_endpgm")

def mfmas(st):
    out = []
    if "s2nomfma" in EXP: return ["s_nop 0"] * 16
    for t in range(4):
        for i in range(4):
            a = acc(t, i)
            out.append(f"v_mfma_f32_16x16x32_bf16 v[{a}:{a+3}], v[{WF[st]+4*t}:{WF[st]+4*t+3}], v[{YF[st]+4*i}:{YF[st]+4*i+3}], v[{a}:{a+3}]")
    return out

def mainloop(A, tag, reads, dma, ntiles, switch, cntreg=None):
    for s in range(4):
        for g in dma(s):
            for x in g: A(x)
    A("s_waitcnt vmcnt(12)")
    A("s_barrier")
    for x in reads(0, 0): A(x)
    A("s_waitcnt vmcnt(8) lgkmcnt(0)")
    A("s_barrier")
    if cntreg is None:
        A(f"s_mov_b32 s31, {ntiles//4 - 1}")
    else:
        A(f"s_mov_b32 s31, {cntreg}")
    def it(k, do_dma, do_read, vm):
        st = k & 1
        rd = [[r] for r in reads(st ^ 1, (k + 1) % 4)] if do_read else []
        dm = dma(k % 4) if do_dma else []
        side = []
        while rd or dm:
            if rd: side.append(rd.pop(0))
            if rd: side.append(rd.pop(0))
            if rd: side.append(rd.pop(0))
            if dm: side.append(dm.pop(0))
        for x in interleave(mfmas(st), side): A(x)
        if vm is not None:
            A(f"s_waitcnt vmcnt({vm}) lgkmcnt(0)")
            A("s_barrier")
    A.label(f"{tag}_loop")
    if switch:
        for x in switch(): A(x)
    for k in range(4):
        it(k, True, True, 8)
    if "s2wrap" in EXP:
        for r in (21, 22, 26, 27): A(f"s_sub_u32 s{r}, s{r}, 512")
        for r in (24, 25): A(f"s_sub_u32 s{r}, s{r}, {4*64*2048}")
    A("s_sub_u32 s31, s31, 1")
    A("s_cmp_lg_u32 s31, 0")
    A(f"s_cbranch_scc1 {tag}_loop")
    it(0, False, True, 4)
    it(1, False, True, 0)
    it(2, False, True, 0)
    it(3, False, False, None)
```

```python
import struct, sys, os
EXP = os.environ.get("EXP", "").split(",")

NAME = "gated_mix__ssm_conv_s5__mixer_channel_mlp__prompt"
KA = dict(x=0, lre=8, lim=16, bre=24, bim=32, cre=40, cim=48, logdt=56, dskip=64, bx=72,
          w1=80, b1=88, w2=96, b2=104, gw=112, out=120, dbg=128, ws=136)
WS_Y = 0
WS_G = 4 << 20
WS_E = 5 << 20
WS_H = 8 << 20
WS_T = 32 << 20
HP = int(os.environ.get("HP", "11264"))
H_BYTES = 2048 * HP

def f32(x):
    return "0x%08x" % struct.unpack("<I", struct.pack("<f", x))[0]

class Asm:
    def __init__(self):
        self.lines = []
        self.cnt = 0
    def __call__(self, s):
        self.lines.append("    " + s)
    def label(self, s):
        self.lines.append(s + ":")
    def newlabel(self, p="L"):
        self.cnt += 1
        return f"{p}_{self.cnt}"
    def comment(self, s):
        self.lines.append("    ; " + s)
    def text(self):
        return "\n".join(self.lines) + "\n"

def vr(a, n=1):
    return f"v{a}" if n == 1 else f"v[{a}:{a+n-1}]"
def sr(a, n=1):
    return f"s{a}" if n == 1 else f"s[{a}:{a+n-1}]"

def srd(A, d, lo, nbytes, off=0):
    if off:
        A(f"s_add_u32 s{d}, s{lo}, {off}")
        A(f"s_addc_u32 s{d+1}, s{lo+1}, 0")
    else:
        A(f"s_mov_b32 s{d}, s{lo}")
        A(f"s_mov_b32 s{d+1}, s{lo+1}")
    A(f"s_mov_b32 s{d+2}, {nbytes}")
    A(f"s_mov_b32 s{d+3}, 0x00020000")

def stamp(A, idx, wsreg, kern=0, wavereg="s32"):
    if "stamp" not in EXP:
        return
    lab = A.newlabel("stamp")
    A(f"s_cmp_lg_u32 {wavereg}, 0")
    A(f"s_cbranch_scc1 {lab}")
    A("s_memrealtime s[92:93]")
    A("s_memtime s[90:91]")
    A(f"s_add_u32 s96, s{wsreg}, {(48 << 20) + kern * 65536}")
    A(f"s_addc_u32 s97, s{wsreg+1}, 0")
    A("s_mov_b32 s98, 65536")
    A("s_mov_b32 s99, 0x00020000")
    A("s_lshl_b32 s94, s2, 5")
    A("s_waitcnt lgkmcnt(0)")
    A("v_mov_b32 v254, s92")
    A("v_mov_b32 v255, 0")
    A(f"buffer_store_dword v254, v255, s[96:99], s94 offen offset:{idx*4}")
    A("v_mov_b32 v253, s90")
    A("s_add_u32 s94, s94, 32768")
    A(f"buffer_store_dword v253, v255, s[96:99], s94 offen offset:{idx*4}")
    A.label(lab)

def kernel_head(A, label):
    A.lines.append(f".globl {label}")
    A.lines.append(".p2align 8")
    A.lines.append(f".type {label},@function")
    A.label(label)

def kd(label, vgpr, sgpr):
    acc = (vgpr + 3) // 4 * 4
    return f""".amdhsa_kernel {label}
  .amdhsa_next_free_vgpr {vgpr}
  .amdhsa_next_free_sgpr {sgpr}
  .amdhsa_accum_offset {acc}
  .amdhsa_group_segment_fixed_size 0
  .amdhsa_kernarg_size 144
  .amdhsa_user_sgpr_count 2
  .amdhsa_user_sgpr_kernarg_segment_ptr 1
  .amdhsa_system_sgpr_workgroup_id_x 1
.end_amdhsa_kernel
"""

def wave_sum(A, regs, stmp):
    for mode in ("quad_perm:[1,0,3,2]", "quad_perm:[2,3,0,1]", "row_half_mirror", "row_mirror"):
        A("s_nop 1")
        for r in regs:
            A(f"v_add_f32_dpp v{r}, v{r}, v{r} {mode} row_mask:0xf bank_mask:0xf")
    for r in regs:
        A("s_nop 1")
        for i in range(4):
            A(f"v_readlane_b32 s{stmp+i}, v{r}, {16*i}")
        A("s_nop 1")
        A(f"v_mov_b32 v{r}, s{stmp}")
        A(f"v_add_f32 v{r}, s{stmp+1}, v{r}")
        A(f"v_add_f32 v{r}, s{stmp+2}, v{r}")
        A(f"v_add_f32 v{r}, s{stmp+3}, v{r}")

def round_bf16(A, d, s):
    A(f"v_cvt_pk_bf16_f32 v{d}, v{s}, v{s}")
    A(f"v_lshlrev_b32 v{d}, 16, v{d}")

def gen_pre(A):
    kernel_head(A, "pre_kernel")
    A("s_cmp_ge_u32 s2, 512")
    A("s_cbranch_scc1 pre_done")
    A(f"s_load_dwordx2 s[4:5], s[0:1], {KA['x']}")
    A(f"s_load_dwordx2 s[6:7], s[0:1], {KA['gw']}")
    A(f"s_load_dwordx2 s[8:9], s[0:1], {KA['ws']}")
    A(f"s_load_dwordx2 s[36:37], s[0:1], {KA['w1']}")
    A(f"s_load_dwordx4 s[44:47], s[0:1], {KA['bre']}")
    A("v_lshrrev_b32 v1, 6, v0")
    A("v_and_b32 v2, 63, v0")
    A("v_readfirstlane_b32 s10, v1")
    A("v_lshlrev_b32 v3, 4, v2")
    A("s_lshl_b32 s11, s2, 2")
    A("s_add_u32 s11, s11, s10")
    A("s_lshl_b32 s12, s11, 11")
    A("s_waitcnt lgkmcnt(0)")
    srd(A, 16, 4, 4 << 20)
    srd(A, 20, 6, 2048)
    srd(A, 24, 8, 4 << 20, WS_Y)
    srd(A, 28, 8, 8192, WS_G)
    A("buffer_load_dwordx4 v[4:7], v3, s[16:19], s12 offen")
    A("buffer_load_dwordx4 v[8:11], v3, s[16:19], s12 offen offset:1024")
    A("buffer_load_dwordx4 v[12:15], v3, s[20:23], 0 offen")
    A("buffer_load_dwordx4 v[16:19], v3, s[20:23], 0 offen offset:1024")
    if "nopf" not in EXP:
        A("v_lshlrev_b32 v56, 7, v2")
        A("s_lshl_b32 s15, s11, 13")
        A("s_cmp_lt_u32 s11, 896")
        A("s_cbranch_scc0 pre_pf1")
        srd(A, 40, 36, 1024 * 7168)
        A("buffer_load_dword v57, v56, s[40:43], s15 offen")
        A("s_branch pre_pf3")
        A.label("pre_pf1")
        A("s_sub_u32 s15, s15, %d" % (896 * 8192))
        A("s_cmp_lt_u32 s11, 1152")
        A("s_cbranch_scc0 pre_pf2")
        srd(A, 40, 44, 2 << 20)
        A("buffer_load_dword v57, v56, s[40:43], s15 offen")
        A("s_branch pre_pf3")
        A.label("pre_pf2")
        A("s_sub_u32 s15, s15, %d" % (256 * 8192))
        A("s_cmp_lt_u32 s11, 1408")
        A("s_cbranch_scc0 pre_pf4")
        srd(A, 40, 46, 2 << 20)
        A("buffer_load_dword v57, v56, s[40:43], s15 offen")
        A("s_branch pre_pf3")
        A.label("pre_pf4")
        A("buffer_load_dword v57, v3, s[20:23], 0 offen")
        A.label("pre_pf3")
    A("s_mov_b32 s13, 0xffff0000")
    A("s_waitcnt vmcnt(%d)" % (2 if "nopf" in EXP else 3))
    for i in range(8):
        A(f"v_lshlrev_b32 v{20+2*i}, 16, v{4+i}")
        A(f"v_and_b32 v{21+2*i}, s13, v{4+i}")
    A("s_waitcnt vmcnt(%d)" % (0 if "nopf" in EXP else 1))
    for i in range(8):
        A(f"v_lshlrev_b32 v{36+2*i}, 16, v{12+i}")
        A(f"v_and_b32 v{37+2*i}, s13, v{12+i}")
    for i in range(16):
        A(f"v_mul_f32 v{36+i}, v{20+i}, v{36+i}")
    for i in range(8):
        A(f"v_cvt_pk_bf16_f32 v{12+i}, v{36+2*i}, v{37+2*i}")
    for i in range(8):
        A(f"v_lshlrev_b32 v{36+2*i}, 16, v{12+i}")
        A(f"v_and_b32 v{37+2*i}, s13, v{12+i}")
    A("v_add_f32 v52, v20, v21")
    A("v_add_f32 v53, v36, v37")
    for i in range(2, 16):
        A(f"v_add_f32 v52, v52, v{20+i}")
        A(f"v_add_f32 v53, v53, v{36+i}")
    wave_sum(A, [52, 53], 32)
    A(f"v_mul_f32 v52, {f32(1.0/1024)}, v52")
    for i in range(16):
        A(f"v_sub_f32 v{36+i}, v{20+i}, v52")
    A("v_mul_f32 v54, v36, v36")
    for i in range(1, 16):
        A(f"v_fmac_f32 v54, v{36+i}, v{36+i}")
    wave_sum(A, [54], 32)
    A(f"v_mul_f32 v54, {f32(1.0/1024)}, v54")
    round_bf16(A, 54, 54)
    A(f"v_add_f32 v54, {f32(1e-5)}, v54")
    round_bf16(A, 54, 54)
    A("v_sqrt_f32 v54, v54")
    A("s_nop 0")
    round_bf16(A, 54, 54)
    A("v_rcp_f32 v54, v54")
    round_bf16(A, 52, 52)
    for i in range(16):
        A(f"v_sub_f32 v{36+i}, v{20+i}, v52")
    for i in range(8):
        A(f"v_cvt_pk_bf16_f32 v{12+i}, v{36+2*i}, v{37+2*i}")
    for i in range(8):
        A(f"v_lshlrev_b32 v{36+2*i}, 16, v{12+i}")
        A(f"v_and_b32 v{37+2*i}, s13, v{12+i}")
    for i in range(16):
        A(f"v_mul_f32 v{36+i}, v{36+i}, v54")
    for i in range(8):
        A(f"v_cvt_pk_bf16_f32 v{4+i}, v{36+2*i}, v{37+2*i}")
    A("buffer_store_dwordx4 v[4:7], v3, s[24:27], s12 offen")
    A("buffer_store_dwordx4 v[8:11], v3, s[24:27], s12 offen offset:1024")
    round_bf16(A, 53, 53)
    A(f"v_mul_f32 v53, {f32(-1.4426950408889634)}, v53")
    A("v_exp_f32 v53, v53")
    A("s_nop 0")
    A("v_add_f32 v53, 1.0, v53")
    A("v_rcp_f32 v53, v53")
    A("s_nop 0")
    round_bf16(A, 53, 53)
    A("s_lshl_b32 s14, s11, 2")
    A("v_mov_b32 v55, 0")
    A("v_cmp_eq_u32 vcc, 0, v2")
    A("s_and_saveexec_b64 s[34:35], vcc")
    A("buffer_store_dword v53, v55, s[28:31], s14 offen")
    A.label("pre_done")
    A("s_endpgm")

def interleave(main, side):
    out = []
    n, m = len(main), len(side)
    j = 0
    for i, x in enumerate(main):
        out.append(x)
        if j < m:
            out.extend(side[j]); j += 1
    while j < m:
        out.extend(side[j]); j += 1
    return out

SLOT1 = 61440
BOFF1 = 32768

def lam_consts(A, vld, vlre, vlim, out, t):
    lr, li, cr, ci = out
    t0, t1, t2, t3, t4, t5 = t
    A(f"v_mul_f32 v{t0}, {f32(1.4426950408889634)}, v{vld}")
    A(f"v_exp_f32 v{t0}, v{t0}")
    A("s_nop 0")
    round_bf16(A, t0, t0)
    A(f"v_mul_f32 v{t1}, v{t0}, v{vlre}")
    A(f"v_mul_f32 v{t2}, v{t0}, v{vlim}")
    A(f"v_mul_f32 v{t1}, {f32(1.4426950408889634)}, v{t1}")
    A(f"v_exp_f32 v{t1}, v{t1}")
    A(f"v_mul_f32 v{t2}, {f32(0.15915494309189535)}, v{t2}")
    A(f"v_rndne_f32 v{t3}, v{t2}")
    A(f"v_sub_f32 v{t2}, v{t2}, v{t3}")
    A(f"v_cos_f32 v{t3}, v{t2}")
    A(f"v_sin_f32 v{t4}, v{t2}")
    A("s_nop 0")
    A(f"v_mul_f32 v{lr}, v{t1}, v{t3}")
    A(f"v_mul_f32 v{li}, v{t1}, v{t4}")
    if cr is None:
        return
    A(f"v_add_f32 v{t0}, -1.0, v{lr}")
    A(f"v_mul_f32 v{t1}, v{vlre}, v{vlre}")
    A(f"v_fmac_f32 v{t1}, v{vlim}, v{vlim}")
    A(f"v_rcp_f32 v{t1}, v{t1}")
    A(f"v_mul_f32 v{t2}, v{t0}, v{vlre}")
    A(f"v_fmac_f32 v{t2}, v{li}, v{vlim}")
    A(f"v_mul_f32 v{t3}, v{li}, v{vlre}")
    A(f"v_fma_f32 v{t3}, -v{t0}, v{vlim}, v{t3}")
    A(f"v_mul_f32 v{cr}, v{t2}, v{t1}")
    A(f"v_mul_f32 v{ci}, v{t3}, v{t1}")

def csquare(A, r, i, t):
    A(f"v_mul_f32 v{t}, v{i}, v{i}")
    A(f"v_mul_f32 v{i}, v{r}, v{i}")
    A(f"v_fma_f32 v{r}, v{r}, v{r}, -v{t}")
    A(f"v_add_f32 v{i}, v{i}, v{i}")

def gen_s1(A):
    kernel_head(A, "s1_kernel")
    A("s_cmp_ge_u32 s2, 256")
    A("s_cbranch_scc1 s1_done")
    A(f"s_load_dwordx2 s[36:37], s[0:1], {KA['x']}")
    A(f"s_load_dwordx4 s[40:43], s[0:1], {KA['lre']}")
    A(f"s_load_dwordx4 s[44:47], s[0:1], {KA['bre']}")
    A(f"s_load_dwordx2 s[48:49], s[0:1], {KA['logdt']}")
    A(f"s_load_dwordx4 s[52:55], s[0:1], {KA['w1']}")
    A(f"s_load_dwordx4 s[56:59], s[0:1], {KA['dbg']}")
    A("v_lshrrev_b32 v1, 6, v0")
    A("v_and_b32 v2, 63, v0")
    A("v_readfirstlane_b32 s32, v1")
    A("s_and_b32 s3, s2, 7")
    A("s_lshr_b32 s33, s2, 3")
    A("s_and_b32 s34, s3, 1")
    A("s_lshl_b32 s34, s34, 2")
    A("s_and_b32 s35, s33, 3")
    A("s_add_u32 s34, s34, s35")
    A("s_lshr_b32 s35, s3, 1")
    A("s_lshl_b32 s35, s35, 2")
    A("s_bfe_u32 s3, s33, 0x20002")
    A("s_add_u32 s35, s35, s3")
    A("s_lshr_b32 s33, s33, 4")
    A("v_lshrrev_b32 v3, 3, v2")
    A("v_and_b32 v4, 7, v2")
    A("v_lshrrev_b32 v5, 1, v3")
    A("v_xor_b32 v4, v4, v5")
    A("v_lshlrev_b32 v4, 4, v4")
    A("v_and_b32 v6, 15, v2")
    A("v_lshrrev_b32 v7, 4, v2")
    A("v_lshrrev_b32 v8, 1, v6")
    A("v_xor_b32 v8, v8, v7")
    A("v_lshlrev_b32 v8, 4, v8")
    A("v_lshl_add_u32 v8, v6, 7, v8")
    A("s_lshr_b32 s60, s32, 1")
    A("s_and_b32 s61, s32, 1")
    A("s_lshl_b32 s62, s60, 13")
    A("v_add_u32 v104, s62, v8")
    A("v_xor_b32 v105, 64, v104")
    A(f"v_add_u32 v106, {SLOT1}, v104")
    A(f"v_add_u32 v107, {SLOT1}, v105")
    A("s_lshl_b32 s29, s32, 12")
    A("s_waitcnt lgkmcnt(0)")
    srd(A, 12, 58, H_BYTES, WS_H)
    stamp(A, 0, 58)
    A("s_cmp_eq_u32 s33, 0")
    A("s_cbranch_scc1 s1_ssm")
    gen_s1_mlp(A)
    A.label("s1_ssm")
    gen_s1_ssm(A)
    A.label("s1_done")
    A("s_endpgm")

def s1_mainloop(A, tag, reads, mfmas, dma, nk=16):
    if "nomfma" in EXP:
        mfmas = lambda st: ["s_nop 0"] * 16
    if "nodma" in EXP:
        dma = lambda slot: []
    if "noread" in EXP:
        reads = lambda a, b, c: []
    def half_a(slot):
        A("s_waitcnt lgkmcnt(0)")
        for x in interleave(mfmas(0), [[r] for r in reads(1, slot, 1)]):
            A(x)
        A("s_waitcnt vmcnt(0) lgkmcnt(0)")
        A("s_barrier")
    def half_b(slot, do_dma, do_read):
        side = []
        rd = [[r] for r in reads(0, slot ^ 1, 0)] if do_read else []
        dm = dma(slot) if do_dma else []
        while rd or dm:
            if rd: side.append(rd.pop(0))
            if rd: side.append(rd.pop(0))
            if dm: side.append(dm.pop(0))
        for x in interleave(mfmas(1), side):
            A(x)
    A(f"s_mov_b32 s31, {nk//2 - 1}")
    A.label(f"{tag}_loop")
    half_a(0); half_b(0, True, True)
    half_a(1); half_b(1, True, True)
    A("s_sub_u32 s31, s31, 1")
    A("s_cmp_lg_u32 s31, 0")
    A(f"s_cbranch_scc1 {tag}_loop")
    half_a(0); half_b(0, False, True)
    half_a(1); half_b(1, False, False)

def gen_s1_mlp(A):
    A.comment("---------------- MLP-up role ----------------")
    srd(A, 4, 58, 4 << 20, WS_Y)
    srd(A, 8, 52, 1024 * 7168)
    srd(A, 16, 54, 7168)
    A("v_lshl_add_u32 v112, v3, 11, v4")
    A("v_xor_b32 v113, 64, v112")
    A("s_lshl_b32 s20, s34, 8")
    A("s_lshl_b32 s63, s32, 5")
    A("s_add_u32 s20, s20, s63")
    A("s_lshl_b32 s20, s20, 11")
    for q in range(1, 4):
        A(f"s_add_u32 s{20+q}, s20, {q*8*2048}")
    A("v_lshrrev_b32 v9, 2, v2")
    A("v_and_b32 v10, 3, v2")
    A("v_lshrrev_b32 v11, 5, v2")
    A("v_lshlrev_b32 v11, 1, v11")
    A("v_xor_b32 v10, v10, v11")
    A("v_lshlrev_b32 v10, 4, v10")
    A("s_movk_i32 s63, 7168")
    A("v_mul_lo_u32 v9, v9, s63")
    A("v_add_u32 v114, v9, v10")
    A("s_mul_i32 s24, s60, 16*7168")
    A("s_mul_i32 s64, s35, 448")
    A("s_add_u32 s24, s24, s64")
    A("s_lshl_b32 s63, s61, 8")
    A("s_add_u32 s24, s24, s63")
    for q in range(1, 4):
        A(f"s_add_u32 s{24+q}, s24, {q*64}")
    A("s_mul_i32 s30, s60, 7")
    A("s_lshl_b32 s63, s61, 2")
    A("s_add_u32 s30, s30, s63")
    A("s_lshl_b32 s30, s30, 10")
    A(f"s_add_u32 s30, s30, {BOFF1}")
    A("s_mov_b32 s28, 64*7168")
    def dma(slot):
        g = []
        for q in range(4):
            g.append([f"s_add_u32 m0, s29, {slot*SLOT1 + q*1024}", "s_nop 0",
                      f"buffer_load_dwordx4 v{112 + (q & 1)}, s[4:7], s{20+q} offen lds"])
        for q in range(3):
            g.append([f"s_add_u32 m0, s30, {slot*SLOT1 + q*1024}", "s_nop 0",
                      f"buffer_load_dwordx4 v114, s[8:11], s{24+q} offen lds"])
        lab = A.newlabel("mlp_skip")
        g.append(["s_cmp_lg_u32 s61, 0", f"s_cbranch_scc1 {lab}",
                  f"s_add_u32 m0, s30, {slot*SLOT1 + 3*1024}", "s_nop 0",
                  f"buffer_load_dwordx4 v114, s[8:11], s27 offen lds", f"{lab}:"])
        g.append(["v_add_u32 v112, 128, v112", "v_add_u32 v113, 128, v113", "v_add_u32 v114, s28, v114"])
        return g
    for slot in range(2):
        for g in dma(slot):
            for x in g: A(x)
    A("v_lshrrev_b32 v9, 1, v7")
    A("s_movk_i32 s63, 7168")
    A("v_mul_lo_u32 v9, v9, s63")
    A("v_and_b32 v10, 1, v7")
    A("v_lshrrev_b32 v11, 2, v6")
    A("v_lshl_add_u32 v11, v10, 3, v11")
    A("v_lshl_add_u32 v9, v11, 6, v9")
    A("v_and_b32 v11, 3, v6")
    A("v_lshl_add_u32 v9, v11, 3, v9")
    A("v_lshl_add_u32 v9, v10, 5, v9")
    A("s_lshl_b32 s63, s61, 5")
    A("v_xor_b32 v108, s63, v9")
    A("v_xor_b32 v109, 32, v108")
    A("s_mul_i32 s63, s61, 3072")
    A(f"s_add_u32 s63, s63, {BOFF1}")
    A("v_add_u32 v108, s63, v108")
    A("s_lshl_b32 s63, s61, 12")
    A(f"s_add_u32 s63, s63, {BOFF1}")
    A("v_add_u32 v109, s63, v109")
    A(f"v_add_u32 v110, {SLOT1}, v108")
    A(f"v_add_u32 v111, {SLOT1}, v109")
    A("s_mul_i32 s63, s61, 224")
    A("s_add_u32 s63, s63, s64")
    A("v_lshlrev_b32 v9, 3, v7")
    for t in range(7):
        A(f"buffer_load_dwordx2 v[{16+2*t}:{17+2*t}], v9, s[16:19], s63 offen offset:{32*t}")
    ACC = 128
    def acc(t, i): return ACC + (t * 4 + i) * 4
    A("s_mov_b32 s65, 0xffff0000")
    A("s_waitcnt vmcnt(0)")
    for t in range(7):
        a = acc(t, 0)
        A(f"v_lshlrev_b32 v{a}, 16, v{16+2*t}")
        A(f"v_and_b32 v{a+1}, s65, v{16+2*t}")
        A(f"v_lshlrev_b32 v{a+2}, 16, v{17+2*t}")
        A(f"v_and_b32 v{a+3}, s65, v{17+2*t}")
        for i in range(1, 4):
            for r in range(4):
                A(f"v_mov_b32 v{acc(t,i)+r}, v{a+r}")
    YF = [16, 60]; WF = [32, 76]
    def reads(st, slot, sub):
        out = []
        for t in range(7):
            base = 108 + 2 * slot + (t & 1)
            off = (2 * sub * 7 + (t >> 1)) * 1024
            d = WF[st] + 4 * t
            out.append(f"ds_read_b64_tr_b16 v[{d}:{d+1}], v{base} offset:{off}")
            out.append(f"ds_read_b64_tr_b16 v[{d+2}:{d+3}], v{base} offset:{off+256}")
            if t < 4:
                y = YF[st] + 4 * t
                out.append(f"ds_read_b128 v[{y}:{y+3}], v{104 + 2*slot + sub} offset:{t*2048}")
        return out
    def mfmas(st):
        out = []
        for t in range(7):
            for i in range(4):
                a = acc(t, i)
                out.append(f"v_mfma_f32_16x16x32_bf16 v[{a}:{a+3}], v[{WF[st]+4*t}:{WF[st]+4*t+3}], v[{YF[st]+4*i}:{YF[st]+4*i+3}], v[{a}:{a+3}]")
        return out
    A("s_barrier")
    stamp(A, 1, 58)
    for x in reads(0, 0, 0): A(x)
    s1_mainloop(A, "mlp", reads, mfmas, dma)
    stamp(A, 2, 58)
    A("s_nop 7"); A("s_nop 7")
    A(f"s_movk_i32 s63, {HP}")
    A("v_mul_lo_u32 v9, v6, s63")
    A("v_lshl_add_u32 v9, v7, 3, v9")
    A("s_lshl_b32 s66, s34, 8")
    A("s_lshl_b32 s67, s60, 6")
    A("s_add_u32 s66, s66, s67")
    A(f"s_mul_i32 s66, s66, {HP}")
    A("s_mul_i32 s67, s61, 224")
    A("s_add_u32 s66, s66, s67")
    A("s_add_u32 s66, s66, s64")
    A(f"s_mov_b32 s68, {f32(-2.302208198)}")
    A(f"s_mov_b32 s69, {f32(-2.302208198*0.044715)}")
    A("v_mov_b32 v10, s68")
    for i in range(4):
        for t in range(7):
            a = acc(t, i)
            T = 16 + 8 * ((i * 7 + t) % 4)
            for r in range(4): A(f"v_mul_f32 v{T+r}, v{a+r}, v{a+r}")
            for r in range(4): A(f"v_fma_f32 v{T+r}, v{T+r}, s69, v10")
            for r in range(4): A(f"v_mul_f32 v{T+r}, v{T+r}, v{a+r}")
            for r in range(4): A(f"v_exp_f32 v{T+r}, v{T+r}")
            for r in range(4): A(f"v_add_f32 v{T+r}, 1.0, v{T+r}")
            for r in range(4): A(f"v_rcp_f32 v{T+r}, v{T+r}")
            for r in range(4): A(f"v_mul_f32 v{T+r}, v{T+r}, v{a+r}")
            A(f"v_cvt_pk_bf16_f32 v{T+4}, v{T}, v{T+1}")
            A(f"v_cvt_pk_bf16_f32 v{T+5}, v{T+2}, v{T+3}")
            A(f"buffer_store_dwordx2 v[{T+4}:{T+5}], v9, s[12:15], s66 offen offset:{32*t}")
        if i < 3:
            A(f"s_add_u32 s66, s66, {16*HP}")
    stamp(A, 3, 58)
    A("s_waitcnt vmcnt(0)")
    stamp(A, 4, 58)
    A("s_endpgm")

def gen_s1_ssm(A):
    A.comment("---------------- SSM role ----------------")
    srd(A, 4, 36, 4 << 20)
    A("s_cmp_lt_u32 s32, 4")
    A("s_cselect_b32 s8, s44, s46")
    A("s_cselect_b32 s9, s45, s47")
    A("s_mov_b32 s10, 0x200000")
    A("s_mov_b32 s11, 0x00020000")
    A("v_lshrrev_b32 v9, 2, v3")
    A("v_and_b32 v10, 3, v3")
    A("v_lshl_add_u32 v9, v9, 4, v10")
    A("v_lshl_add_u32 v112, v9, 11, v4")
    A("v_xor_b32 v113, 64, v112")
    A("s_lshl_b32 s20, s34, 8")
    A("s_lshl_b32 s63, s60, 6")
    A("s_add_u32 s20, s20, s63")
    A("s_lshl_b32 s63, s61, 3")
    A("s_add_u32 s20, s20, s63")
    A("s_lshl_b32 s20, s20, 11")
    for q in range(1, 4):
        A(f"s_add_u32 s{20+q}, s20, {(32*(q&1) + 4*(q>>1))*2048}")
    A("v_lshl_add_u32 v114, v3, 12, v4")
    A("v_xor_b32 v115, 64, v114")
    A("s_lshl_b32 s64, s35, 6")
    A("s_and_b32 s63, s60, 1")
    A("s_lshl_b32 s63, s63, 5")
    A("s_add_u32 s24, s64, s63")
    A("s_add_u32 s24, s24, s61")
    A("s_lshl_b32 s24, s24, 11")
    A(f"s_add_u32 s25, s24, {16*2048}")
    A("s_lshl_b32 s30, s32, 11")
    A(f"s_add_u32 s30, s30, {BOFF1}")
    def dma(slot):
        g = []
        for q in range(4):
            g.append([f"s_add_u32 m0, s29, {slot*SLOT1 + q*1024}", "s_nop 0",
                      f"buffer_load_dwordx4 v{112 + (q & 1)}, s[4:7], s{20+q} offen lds"])
        for q in range(2):
            g.append([f"s_add_u32 m0, s30, {slot*SLOT1 + q*1024}", "s_nop 0",
                      f"buffer_load_dwordx4 v{114+q}, s[8:11], s{24+q} offen lds"])
        g.append([f"v_add_u32 v{112+j}, 128, v{112+j}" for j in range(4)])
        return g
    for slot in range(2):
        for g in dma(slot):
            for x in g: A(x)
    A("s_lshl_b32 s63, s61, 12")
    A(f"s_add_u32 s63, s63, {BOFF1}")
    A("v_add_u32 v108, s63, v8")
    A("v_xor_b32 v109, 64, v108")
    A(f"v_add_u32 v110, {SLOT1}, v108")
    A(f"v_add_u32 v111, {SLOT1}, v109")
    srd(A, 68, 40, 2048); srd(A, 72, 42, 2048); srd(A, 76, 48, 2048)
    A("s_lshl_b32 s63, s61, 5")
    A("s_add_u32 s63, s63, s64")
    A("s_lshl_b32 s63, s63, 1")
    A("v_lshlrev_b32 v9, 2, v6")
    A("buffer_load_dword v16, v9, s[68:71], s63 offen")
    A("buffer_load_dword v17, v9, s[72:75], s63 offen")
    A("buffer_load_dword v18, v9, s[76:79], s63 offen")
    A("s_lshl_b32 s63, s64, 1")
    A("v_lshlrev_b32 v9, 1, v2")
    A("buffer_load_ushort v19, v9, s[68:71], s63 offen")
    A("buffer_load_ushort v20, v9, s[72:75], s63 offen")
    A("buffer_load_ushort v21, v9, s[76:79], s63 offen")
    ACC = 128
    def acc(c, p, i): return ACC + ((c * 2 + p) * 4 + i) * 4
    for r in range(64):
        A(f"v_mov_b32 v{ACC+r}, 0")
    A("s_mov_b32 s65, 0xffff0000")
    A("s_waitcnt vmcnt(0)")
    CST = 200
    for c in range(2):
        for k in range(3):
            if c == 0: A(f"v_lshlrev_b32 v{22+k}, 16, v{16+k}")
            else:      A(f"v_and_b32 v{22+k}, s65, v{16+k}")
        lam_consts(A, 24, 22, 23, [CST+4*c, CST+4*c+1, CST+4*c+2, CST+4*c+3], [26, 27, 28, 29, 30, 31])
    for k in range(3):
        A(f"v_lshlrev_b32 v{22+k}, 16, v{19+k}")
    lam_consts(A, 24, 22, 23, [208, 209, None, None], [26, 27, 28, 29, 30, 31])
    for _ in range(4): csquare(A, 208, 209, 26)
    A("v_mov_b32 v210, v208"); A("v_mov_b32 v211, v209")
    for _ in range(4): csquare(A, 210, 211, 26)
    XF = [16, 48]; BF = [32, 64]
    def reads(st, slot, sub):
        out = []
        for i in range(4):
            x = XF[st] + 4 * i
            out.append(f"ds_read_b128 v[{x}:{x+3}], v{104 + 2*slot + sub} offset:{i*2048}")
            c, p = i >> 1, i & 1
            b = BF[st] + 4 * (c * 2 + p)
            out.append(f"ds_read_b128 v[{b}:{b+3}], v{108 + 2*slot + sub} offset:{(64*p + 16*c)*128}")
        return out
    def mfmas(st):
        out = []
        for c in range(2):
            for p in range(2):
                for i in range(4):
                    a = acc(c, p, i); b = BF[st] + 4 * (c * 2 + p); x = XF[st] + 4 * i
                    out.append(f"v_mfma_f32_16x16x32_bf16 v[{a}:{a+3}], v[{x}:{x+3}], v[{b}:{b+3}], v[{a}:{a+3}]")
        return out
    A("s_barrier")
    stamp(A, 1, 58)
    for x in reads(0, 0, 0): A(x)
    s1_mainloop(A, "ssm", reads, mfmas, dma)
    stamp(A, 2, 58)
    A("s_nop 7"); A("s_nop 7")
    def el(c, p, tau): return acc(c, p, tau >> 2) + (tau & 3)
    for tau in range(16):
        for c in range(2):
            cr, ci = CST + 4*c + 2, CST + 4*c + 3
            ur, ui = el(c, 0, tau), el(c, 1, tau)
            t0, t1 = 16 + 2*c, 17 + 2*c
            A(f"v_mul_f32 v{t0}, v{ci}, v{ui}")
            A(f"v_mul_f32 v{t1}, v{ci}, v{ur}")
            A(f"v_fma_f32 v{ur}, v{cr}, v{ur}, -v{t0}")
            A(f"v_fma_f32 v{ui}, v{cr}, v{ui}, v{t1}")
    def step(src, dst, tau):
        ins = [[], []]
        for c in range(2):
            lr, li = CST + 4*c, CST + 4*c + 1
            ur, ui = el(c, 0, tau), el(c, 1, tau)
            er, ei = src + 2*c, src + 2*c + 1
            dr, di = dst[c]
            A(f"v_fma_f32 v{28+2*c}, v{lr}, v{er}, v{ur}")
            A(f"v_fma_f32 v{29+2*c}, v{lr}, v{ei}, v{ui}")
        for c in range(2):
            lr, li = CST + 4*c, CST + 4*c + 1
            er, ei = src + 2*c, src + 2*c + 1
            dr, di = dst[c]
            A(f"v_fma_f32 v{dr}, -v{li}, v{ei}, v{28+2*c}")
            A(f"v_fma_f32 v{di}, v{li}, v{er}, v{29+2*c}")
    for c in range(2):
        A(f"v_mov_b32 v{24+2*c}, v{el(c,0,0)}")
        A(f"v_mov_b32 v{25+2*c}, v{el(c,1,0)}")
    cur = 24
    for tau in range(1, 16):
        nxt = 44 - cur
        step(cur, [(nxt, nxt+1), (nxt+2, nxt+3)], tau)
        cur = nxt
    assert cur == 20
    A("s_barrier")
    A("s_lshl_b32 s63, s60, 11")
    A("s_lshl_b32 s66, s61, 8")
    A("s_add_u32 s63, s63, s66")
    A("v_lshlrev_b32 v9, 9, v7")
    A("v_lshl_add_u32 v9, v6, 4, v9")
    A("v_add_u32 v9, s63, v9")
    A("ds_write_b128 v9, v[20:23]")
    A("s_waitcnt lgkmcnt(0)")
    A("s_barrier")
    A("s_cmp_lg_u32 s32, 0")
    A("s_cbranch_scc1 ssm_wait")
    A("v_lshlrev_b32 v10, 3, v2")
    for s in range(16):
        A(f"ds_read_b64 v[{32+2*s}:{33+2*s}], v10 offset:{s*512}")
    srd(A, 68, 58, 65536, WS_E)
    srd(A, 72, 56, 256)
    A("s_waitcnt lgkmcnt(0)")
    def cstep(er, ei, mr, mi, ur, ui):
        A(f"v_fma_f32 v28, v{mr}, v{er}, v{ur}")
        A(f"v_fma_f32 v29, v{mr}, v{ei}, v{ui}")
        A(f"v_fma_f32 v28, -v{mi}, v{ei}, v28")
        A(f"v_fma_f32 v{ei}, v{mi}, v{er}, v29")
        A(f"v_mov_b32 v{er}, v28")
    A("v_mov_b32 v24, v32"); A("v_mov_b32 v25, v33")
    for s in range(1, 16):
        cstep(24, 25, 208, 209, 32+2*s, 33+2*s)
    A("s_lshl_b32 s63, s34, 13")
    A("s_lshl_b32 s66, s35, 9")
    A("s_add_u32 s63, s63, s66")
    A("buffer_store_dwordx2 v[24:25], v10, s[68:71], s63 offen sc0 sc1")
    A("s_waitcnt vmcnt(0)")
    A("s_lshl_b32 s67, 1, s34")
    A("v_mov_b32 v11, s67")
    A("s_lshl_b32 s80, s35, 2")
    A("v_mov_b32 v12, 0")
    A("s_mov_b64 s[82:83], exec")
    A("s_mov_b64 exec, 1")
    A("buffer_atomic_or v11, v12, s[72:75], s80 offen sc1")
    A("s_mov_b64 exec, s[82:83]")
    A("s_sub_u32 s67, s67, 1")
    A("v_mov_b32 v24, 0"); A("v_mov_b32 v25, 0")
    A("s_cmp_eq_u32 s34, 0")
    A("s_cbranch_scc1 ssm_nolook")
    A("s_mov_b32 s81, 0x100000")
    A.label("ssm_poll")
    A("buffer_load_dword v13, v12, s[72:75], s80 offen sc0 sc1")
    A("s_waitcnt vmcnt(0)")
    A("v_readfirstlane_b32 s84, v13")
    A("s_and_b32 s84, s84, s67")
    A("s_cmp_eq_u32 s84, s67")
    A("s_cbranch_scc1 ssm_ready")
    A("s_sleep 2")
    A("s_sub_u32 s81, s81, 1")
    A("s_cmp_lg_u32 s81, 0")
    A("s_cbranch_scc1 ssm_poll")
    A.label("ssm_ready")
    for cc in range(7):
        if cc:
            A(f"s_cmp_le_u32 s34, {cc}")
            A("s_cbranch_scc1 ssm_loaded")
        A(f"s_add_u32 s84, s66, {cc*8192}")
        A(f"buffer_load_dwordx2 v[{64+2*cc}:{65+2*cc}], v10, s[68:71], s84 offen sc0 sc1")
    A.label("ssm_loaded")
    A("s_waitcnt vmcnt(0)")
    for cc in range(7):
        A(f"s_cmp_le_u32 s34, {cc}")
        A("s_cbranch_scc1 ssm_nolook")
        cstep(24, 25, 210, 211, 64+2*cc, 65+2*cc)
    A.label("ssm_nolook")
    for s in range(16):
        A(f"ds_write_b64 v10, v[24:25] offset:{8192 + s*512}")
        if s < 15:
            cstep(24, 25, 208, 209, 32+2*s, 33+2*s)
    A("s_waitcnt lgkmcnt(0)")
    A.label("ssm_wait")
    A("s_barrier")
    stamp(A, 3, 58)
    A("ds_read_b128 v[20:23], v9 offset:8192")
    A(f"s_mov_b32 s63, {16*HP}")
    A("v_mul_lo_u32 v10, v7, s63")
    A("v_lshl_add_u32 v10, v6, 2, v10")
    A("s_lshl_b32 s66, s34, 8")
    A("s_lshl_b32 s67, s60, 6")
    A("s_add_u32 s66, s66, s67")
    A(f"s_mul_i32 s66, s66, {HP}")
    A("s_lshl_b32 s67, s61, 6")
    A("s_add_u32 s66, s66, s67")
    A("s_lshl_b32 s67, s64, 1")
    A("s_add_u32 s66, s66, s67")
    A(f"s_add_u32 s66, s66, {3584*2}")
    A("s_waitcnt lgkmcnt(0)")
    cur = 20
    for tau in range(16):
        nxt = 44 - cur
        step(cur, [(nxt, nxt+1), (nxt+2, nxt+3)], tau)
        cur = nxt
        o = 32 + 2 * (tau % 8)
        A(f"v_cvt_pk_bf16_f32 v{o}, v{cur}, v{cur+2}")
        A(f"v_cvt_pk_bf16_f32 v{o+1}, -v{cur+1}, -v{cur+3}")
        A(f"buffer_store_dword v{o}, v10, s[12:15], s66 offen")
        A(f"buffer_store_dword v{o+1}, v10, s[12:15], s66 offen offset:2048")
        if tau < 15:
            A(f"s_add_u32 s66, s66, {HP}")
    stamp(A, 4, 58)
    if "nopf" not in EXP and "nopf2" not in EXP:
        A(f"s_load_dwordx2 s[36:37], s[0:1], {KA['w2']}")
        A(f"s_load_dwordx4 s[40:43], s[0:1], {KA['cre']}")
        A("s_lshl_b32 s63, s34, 4")
        A("s_add_u32 s63, s63, s35")
        A("s_lshl_b32 s63, s63, 3")
        A("s_add_u32 s63, s63, s32")
        A("v_lshlrev_b32 v16, 7, v2")
        A("s_waitcnt lgkmcnt(0)")
        srd(A, 68, 36, 3584 * 2048)
        srd(A, 72, 40, 2 << 20)
        srd(A, 76, 42, 2 << 20)
        A("s_lshl_b32 s66, s63, 13")
        A("s_cmp_lt_u32 s63, 896")
        A("s_cbranch_scc0 ssm_pf1")
        A("buffer_load_dword v17, v16, s[68:71], s66 offen")
        A.label("ssm_pf1")
        A("s_cmp_lt_u32 s63, 256")
        A("s_cbranch_scc0 ssm_pf2")
        A("buffer_load_dword v18, v16, s[72:75], s66 offen")
        A("s_branch ssm_pf3")
        A.label("ssm_pf2")
        A("s_cmp_lt_u32 s63, 512")
        A("s_cbranch_scc0 ssm_pf3")
        A("s_sub_u32 s66, s66, %d" % (256 * 8192))
        A("buffer_load_dword v18, v16, s[76:79], s66 offen")
        A.label("ssm_pf3")
    A("s_waitcnt vmcnt(0)")
    stamp(A, 5, 58)

def main():
    hdr = open("cdna_kernels/" + NAME + ".s.ref").read().split("; Override launch")[0]
    A = Asm()
    gen_pre(A)
    gen_s1(A)
    launches = [("pre_kernel", 512, 256, 0), ("s1_kernel", 256, 512, 2 * SLOT1)]
    kds = [kd("pre_kernel", 64, 56), kd("s1_kernel", 256 if "stamp" in EXP else 240, 100)]
    try:
        import gen2
        gen2.gen_s2(A)
        launches.append(("s2_kernel", 256, 512, gen2.LDS))
        kds.append(kd("s2_kernel", gen2.VGPR, 96))
    except ImportError:
        pass
    out = hdr
    for n, g, b, l in launches:
        out += f"; @launch kernel={n} grid=({g},1,1) block=({b},1,1) lds={l}\n"
    out += '.amdgcn_target "amdgcn-amd-amdhsa--gfx950"\n.text\n'
    out += A.text()
    out += '.section .rodata,"a"\n'
    for k in kds:
        out += ".p2align 6\n" + k
    dst = sys.argv[1] if len(sys.argv) > 1 else "cdna_kernels/" + NAME + ".s"
    open(dst, "w").write(out)

if __name__ == "__main__":
    main()
```

```python
import os
from gen import *
NS = int(os.environ.get("NS", "5"))
SLOT = 32768
BOFF = 16384
LDS = NS * SLOT
VGPR = 256 if "stamp" in EXP else 224
KP = int(os.environ.get("KP", "50"))
POLA = os.environ.get("POLA", "")
POLB = os.environ.get("POLB", "")
ACC2 = 128
ACC1 = 64
YF = [192, 208]
WF = [16, 32]

def mfmas(st, base):
    if "s2nomfma" in EXP: return ["s_nop 0"] * 16
    out = []
    for t in range(4):
        for i in range(4):
            a = base + (t * 4 + i) * 4
            out.append(f"v_mfma_f32_16x16x32_bf16 v[{a}:{a+3}], v[{WF[st]+4*t}:{WF[st]+4*t+3}], v[{YF[st]+4*i}:{YF[st]+4*i+3}], v[{a}:{a+3}]")
    return out

def reads_c(s):
    out = []
    for t in range(4):
        w = WF[s] + 4 * t; y = YF[s] + 4 * t
        out.append(f"ds_read_b128 v[{w}:{w+3}], v{50 + s} offset:{t*2048}")
        out.append(f"ds_read_b128 v[{y}:{y+3}], v{48 + s} offset:{t*2048}")
    return out

def reads_w(s):
    out = []
    for t in range(4):
        w = WF[s] + 4 * t; y = YF[s] + 4 * t
        o = s * 8192 + (t >> 1) * 1024
        b = 52 + (t & 1)
        out.append(f"ds_read_b64_tr_b16 v[{w}:{w+1}], v{b} offset:{o}")
        out.append(f"ds_read_b64_tr_b16 v[{w+2}:{w+3}], v{b} offset:{o+256}")
        out.append(f"ds_read_b128 v[{y}:{y+3}], v{48 + s} offset:{t*2048}")
    return out

def adv(kind):
    out = [f"s_add_u32 s28, s28, {SLOT}", f"s_cmp_eq_u32 s28, {NS*SLOT}", "s_cselect_b32 s28, 0, s28",
           "v_add_u32 v48, s28, v56", "v_add_u32 v49, s28, v57"]
    if kind == "c": out += ["v_add_u32 v50, s28, v58", "v_add_u32 v51, s28, v59"]
    else:           out += ["v_add_u32 v52, s28, v60", "v_add_u32 v53, s28, v61"]
    return out

def cons_iter(A, base, rd_cur, rd_next, kind_next):
    A("s_waitcnt lgkmcnt(0)")
    side = [[r] for r in rd_cur(1)]
    for x in interleave(mfmas(0, base), side): A(x)
    A("s_waitcnt lgkmcnt(0)")
    m = mfmas(1, base)
    if rd_next is None:
        for x in m: A(x)
        return
    a = adv(kind_next)
    side = [a[:4], a[4:] + ["s_barrier"]] + [[r] for r in rd_next(0)]
    for x in interleave(m, side): A(x)

def touch(A, lab):
    if "nopf3" in EXP: return
    A("s_cmp_lg_u32 s31, s20")
    A(f"s_cbranch_scc1 {lab}")
    A("buffer_load_dword v63, v62, s[4:7], s21 offen")
    A.label(lab)

def gen_s2(A):
    kernel_head(A, "s2_kernel")
    A("s_cmp_ge_u32 s2, 256")
    A("s_cbranch_scc1 s2_done")
    A(f"s_load_dwordx2 s[36:37], s[0:1], {KA['x']}")
    A(f"s_load_dwordx4 s[40:43], s[0:1], {KA['cre']}")
    A(f"s_load_dwordx2 s[44:45], s[0:1], {KA['dskip']}")
    A(f"s_load_dwordx4 s[48:51], s[0:1], {KA['w2']}")
    A(f"s_load_dwordx2 s[52:53], s[0:1], {KA['out']}")
    A(f"s_load_dwordx4 s[56:59], s[0:1], {KA['dbg']}")
    A("v_lshrrev_b32 v1, 6, v0")
    A("v_and_b32 v2, 63, v0")
    A("v_readfirstlane_b32 s32, v1")
    A("s_and_b32 s3, s2, 7")
    A("s_lshr_b32 s33, s2, 3")
    A("s_and_b32 s34, s3, 1")
    A("s_lshl_b32 s34, s34, 3")
    A("s_and_b32 s35, s33, 7")
    A("s_add_u32 s34, s34, s35")
    A("s_bfe_u32 s35, s3, 0x10001")
    A("s_lshl_b32 s35, s35, 2")
    A("s_lshr_b32 s33, s33, 3")
    A("s_add_u32 s35, s35, s33")
    A("s_lshr_b32 s33, s3, 2")
    A("s_cmp_ge_u32 s32, 4")
    A("s_cbranch_scc1 s2_loader")
    A("v_and_b32 v6, 15, v2")
    A("v_lshrrev_b32 v7, 4, v2")
    A("v_lshrrev_b32 v8, 1, v6")
    A("v_xor_b32 v8, v8, v7")
    A("v_lshlrev_b32 v8, 4, v8")
    A("v_lshl_add_u32 v8, v6, 7, v8")
    A("s_lshr_b32 s60, s32, 1")
    A("s_and_b32 s61, s32, 1")
    A("s_lshl_b32 s63, s60, 13")
    A("v_add_u32 v56, s63, v8")
    A("v_xor_b32 v57, 64, v56")
    A("s_lshl_b32 s63, s61, 13")
    A(f"s_add_u32 s63, s63, {BOFF}")
    A("v_add_u32 v58, s63, v8")
    A("v_xor_b32 v59, 64, v58")
    A("v_lshrrev_b32 v9, 1, v7")
    A("v_lshlrev_b32 v9, 12, v9")
    A("v_and_b32 v10, 1, v7")
    A("v_lshrrev_b32 v11, 2, v6")
    A("v_lshl_add_u32 v11, v10, 3, v11")
    A("v_lshl_add_u32 v9, v11, 6, v9")
    A("v_and_b32 v11, 3, v6")
    A("v_lshl_add_u32 v9, v11, 3, v9")
    A("v_lshl_add_u32 v9, v10, 5, v9")
    A("s_lshl_b32 s64, s61, 11")
    A(f"s_add_u32 s63, s64, {BOFF}")
    A("v_add_u32 v60, s63, v9")
    A("v_xor_b32 v61, 32, v60")
    for j in range(6): A(f"v_mov_b32 v{48+j}, v{56+j}")
    A("s_mov_b32 s28, 0")
    for r in range(64): A(f"v_mov_b32 v{ACC2+r}, 0")
    A("s_waitcnt lgkmcnt(0)")
    srd(A, 16, 58, 8192, WS_G)
    stamp(A, 0, 58, 1)
    A("s_lshl_b32 s63, s34, 7")
    A("s_lshl_b32 s64, s60, 6")
    A("s_add_u32 s65, s63, s64")
    A("s_lshl_b32 s63, s65, 2")
    A("v_lshlrev_b32 v9, 2, v6")
    for i in range(4):
        A(f"buffer_load_dword v{12+i}, v9, s[16:19], s63 offen offset:{64*i}")
    A("s_lshl_b32 s63, s34, 3")
    A("s_add_u32 s63, s63, s35")
    A("s_lshl_b32 s64, s32, 7")
    A("s_add_u32 s63, s63, s64")
    A("v_lshlrev_b32 v62, 7, v2")
    srd(A, 4, 48, 3584 * 2048)
    A("s_cmp_eq_u32 s33, 0")
    A("s_cbranch_scc1 s2_cons_p")
    A("s_cmp_lt_u32 s63, 256")
    A("s_cbranch_scc0 s2_tq1")
    srd(A, 4, 42, 2 << 20)
    A("s_lshl_b32 s21, s63, 13")
    A("s_lshr_b32 s20, s63, 5")
    A("s_sub_u32 s20, 31, s20")
    A("s_branch s2_tq2")
    A.label("s2_tq1")
    A("s_sub_u32 s63, s63, 256")
    A("s_lshl_b32 s21, s63, 13")
    A(f"s_add_u32 s21, s21, {KP*64*2048}")
    A("s_lshr_b32 s20, s63, 4")
    A("s_sub_u32 s20, 22, s20")
    A(f"s_cmp_lt_u32 s63, {(56-KP)*16}")
    A("s_cselect_b32 s20, s20, 99")
    A.label("s2_tq2")
    for r in range(64): A(f"v_mov_b32 v{ACC1+r}, 0")
    A("s_barrier")
    for x in reads_c(0): A(x)
    A("s_mov_b32 s31, 31")
    A.label("s2_cc_loop")
    touch(A, "s2_t1")
    cons_iter(A, ACC1, reads_c, reads_c, "c")
    A("s_sub_u32 s31, s31, 1")
    A("s_cmp_lg_u32 s31, 0")
    A("s_cbranch_scc1 s2_cc_loop")
    cons_iter(A, ACC1, reads_c, reads_w, "w")
    A(f"s_mov_b32 s31, {56 - KP - 1}")
    A("s_mov_b32 s20, 99")
    stamp(A, 1, 58, 1)
    A("s_branch s2_cw_loop")
    A.label("s2_cons_p")
    A("s_lshl_b32 s21, s63, 13")
    A(f"s_add_u32 s21, s21, {(KP-32)*64*2048}")
    A("s_lshr_b32 s20, s63, 4")
    A(f"s_sub_u32 s20, {KP - 1}, s20")
    A(f"s_cmp_lt_u32 s63, 512")
    A("s_cselect_b32 s20, s20, 99")
    A("s_barrier")
    stamp(A, 1, 58, 1)
    for x in reads_w(0): A(x)
    A(f"s_mov_b32 s31, {KP - 1}")
    A.label("s2_cw_loop")
    touch(A, "s2_t2")
    cons_iter(A, ACC2, reads_w, reads_w, "w")
    A("s_sub_u32 s31, s31, 1")
    A("s_cmp_lg_u32 s31, 0")
    A("s_cbranch_scc1 s2_cw_loop")
    cons_iter(A, ACC2, reads_w, None, None)
    stamp(A, 2, 58, 1)
    A("s_waitcnt vmcnt(0)")
    for i in range(4):
        A(f"v_sub_f32 v{8+i}, 1.0, v{12+i}")
        round_bf16(A, 8+i, 8+i)
        A(f"v_add_f32 v{12+i}, v{12+i}, v{12+i}")
    A(f"s_add_u32 s28, s28, {SLOT}")
    A(f"s_cmp_eq_u32 s28, {NS*SLOT}")
    A("s_cselect_b32 s28, 0, s28")
    A(f"s_add_u32 s29, s28, {SLOT}")
    A(f"s_cmp_eq_u32 s29, {NS*SLOT}")
    A("s_cselect_b32 s29, 0, s29")
    A("s_cmp_eq_u32 s60, 0")
    A("s_cselect_b32 s28, s28, s29")
    A("s_lshl_b32 s63, s61, 8")
    A("s_add_u32 s28, s28, s63")
    A("v_and_b32 v16, 7, v6")
    A("v_xor_b32 v16, v16, v7")
    A("v_lshlrev_b32 v16, 4, v16")
    A("v_lshl_add_u32 v16, v6, 9, v16")
    A("v_add_u32 v16, s28, v16")
    A("v_xor_b32 v17, 64, v16")
    A("s_cmp_eq_u32 s33, 0")
    A("s_cbranch_scc1 s2_scale_p")
    for t in range(4):
        for i in range(4):
            a = ACC2 + (t*4+i)*4; c = ACC1 + (t*4+i)*4
            for r in range(4): A(f"v_mul_f32 v{c+r}, v{12+i}, v{c+r}")
            for r in range(4): A(f"v_fma_f32 v{a+r}, v{8+i}, v{a+r}, v{c+r}")
            A(f"ds_write_b128 v{16 + (t & 1)}, v[{a}:{a+3}] offset:{i*8192 + (t >> 1)*128}")
    A("s_branch s2_scaled")
    A.label("s2_scale_p")
    for t in range(4):
        for i in range(4):
            a = ACC2 + (t*4+i)*4
            for r in range(4): A(f"v_mul_f32 v{a+r}, v{8+i}, v{a+r}")
            A(f"ds_write_b128 v{16 + (t & 1)}, v[{a}:{a+3}] offset:{i*8192 + (t >> 1)*128}")
    A.label("s2_scaled")
    A("s_waitcnt lgkmcnt(0)")
    A("s_barrier")
    stamp(A, 3, 58, 1)
    A("s_endpgm")

    A.label("s2_loader")
    A("s_sub_u32 s62, s32, 4")
    A("v_lshrrev_b32 v3, 3, v2")
    A("v_and_b32 v4, 7, v2")
    A("v_lshrrev_b32 v5, 1, v3")
    A("v_xor_b32 v4, v4, v5")
    A("v_lshlrev_b32 v4, 4, v4")
    A(f"s_movk_i32 s63, {HP}")
    A("v_mul_lo_u32 v9, v3, s63")
    A("v_add_u32 v48, v9, v4")
    A("v_xor_b32 v49, 64, v48")
    A(f"v_add_u32 v49, {8*HP}, v49")
    A(f"v_add_u32 v50, {16*HP}, v48")
    A(f"v_add_u32 v51, {16*HP}, v49")
    A("v_lshl_add_u32 v52, v3, 11, v4")
    A("v_xor_b32 v53, 64, v52")
    A(f"v_add_u32 v53, {8*2048}, v53")
    A(f"v_add_u32 v54, {16*2048}, v52")
    A(f"v_add_u32 v55, {16*2048}, v53")
    A("v_lshrrev_b32 v9, 2, v2")
    A("v_and_b32 v10, 3, v2")
    A("v_lshrrev_b32 v11, 5, v2")
    A("v_lshlrev_b32 v11, 1, v11")
    A("v_xor_b32 v10, v10, v11")
    A("v_lshlrev_b32 v10, 4, v10")
    A("v_lshl_add_u32 v56, v9, 11, v10")
    for q in range(1, 4): A(f"v_add_u32 v{56+q}, {64*q}, v56")
    A("s_lshl_b32 s20, s34, 7")
    A("s_lshl_b32 s63, s62, 5")
    A("s_add_u32 s65, s20, s63")
    A(f"s_mul_i32 s20, s65, {HP}")
    A("s_lshl_b32 s29, s62, 12")
    A(f"s_add_u32 s30, s29, {NS*SLOT}")
    A("s_lshl_b32 s24, s62, 15")
    A("s_lshl_b32 s63, s35, 8")
    A("s_add_u32 s24, s24, s63")
    A("v_lshrrev_b32 v5, 5, v2")
    A("v_and_b32 v6, 31, v2")
    A("v_lshlrev_b32 v7, 4, v6")
    A("v_lshl_add_u32 v7, v5, 16, v7")
    A("s_lshl_b32 s66, s65, 12")
    A("s_lshl_b32 s63, s35, 9")
    A("s_add_u32 s66, s66, s63")
    A("s_lshl_b32 s80, s34, 3")
    A("s_add_u32 s80, s80, s35")
    A("s_and_b32 s81, s80, 1")
    A("s_lshl_b32 s81, 1, s81")
    A("s_lshr_b32 s80, s80, 1")
    A("s_lshl_b32 s80, s80, 2")
    A("v_mov_b32 v62, 0")
    A("s_waitcnt lgkmcnt(0)")
    srd(A, 4, 58, H_BYTES, WS_H)
    srd(A, 68, 58, 8 << 20, WS_T)
    srd(A, 72, 56, 256)
    def issue():
        for q in range(4):
            A(f"s_add_u32 m0, s29, {q*1024}")
            A("s_nop 0")
            A(f"buffer_load_dwordx4 v{48+q}, s[4:7], s21 offen{POLA} lds")
        for q in range(4):
            A(f"s_add_u32 m0, s29, {BOFF + q*1024}")
            A("s_nop 0")
            A(f"buffer_load_dwordx4 v{52+q}, s[8:11], s26 offen{POLB} lds")
        A("s_add_u32 s21, s21, 128")
        A("s_add_u32 s26, s26, s27")
        A(f"s_add_u32 s29, s29, {SLOT}")
        A("s_cmp_eq_u32 s29, s30")
        A(f"s_cselect_b32 s63, {NS*SLOT}, 0")
        A("s_sub_u32 s29, s29, s63")
    def wmode(k0):
        srd(A, 8, 48, 3584 * 2048)
        for q in range(4): A(f"v_mov_b32 v{52+q}, v{56+q}")
        A(f"s_add_u32 s26, s24, {k0*64*2048}")
        A(f"s_mov_b32 s27, {64*2048}")
        A(f"s_add_u32 s21, s20, {k0*128}")
    A("s_cmp_eq_u32 s33, 0")
    A("s_cbranch_scc1 s2_ld_p")
    srd(A, 8, 40, 2 << 20)
    A(f"s_add_u32 s21, s20, {3584*2}")
    A("s_lshl_b32 s26, s35, 7")
    A("s_lshl_b32 s63, s62, 5")
    A("s_add_u32 s26, s26, s63")
    A("s_lshl_b32 s26, s26, 11")
    A("s_movk_i32 s27, 128")
    issue(); issue()
    srd(A, 12, 36, 4 << 20)
    srd(A, 16, 44, 2048)
    srd(A, 76, 50, 2048)
    srd(A, 84, 58, 8192, WS_G)
    A("v_lshrrev_b32 v8, 1, v7")
    A("s_lshr_b32 s67, s66, 1")
    for j in range(16):
        A(f"buffer_load_dwordx2 v[{64+2*j}:{65+2*j}], v8, s[12:15], s67 offen offset:{(j & 1)*2048}")
        if j & 1: A("s_add_u32 s67, s67, 4096")
    A("v_lshlrev_b32 v8, 3, v6")
    A("s_lshl_b32 s67, s35, 8")
    A("buffer_load_dwordx2 v[96:97], v8, s[16:19], s67 offen")
    A("buffer_load_dwordx2 v[98:99], v8, s[76:79], s67 offen")
    A("v_lshlrev_b32 v8, 6, v5")
    A("s_lshl_b32 s67, s65, 2")
    for j in range(4):
        A(f"buffer_load_dwordx4 v[{100+4*j}:{103+4*j}], v8, s[84:87], s67 offen offset:{16*j}")
    for s in range(2, NS): issue()
    A(f"s_waitcnt vmcnt({8*(NS-1) + 22})")
    A("s_barrier")
    A(f"s_mov_b32 s31, {NS}")
    A(f"s_mov_b32 s64, {32 + 56 - KP}")
    A(f"s_waitcnt vmcnt({8*(NS-2) + 22})")
    A("s_branch s2_ld_loop1")
    A.label("s2_ld_p")
    wmode(0)
    for s in range(NS): issue()
    A(f"s_waitcnt vmcnt({8*(NS-1)})")
    A("s_barrier")
    A(f"s_mov_b32 s31, {NS + 64}")
    A(f"s_mov_b32 s64, {KP + 64}")
    A.label("s2_ld_loop")
    A(f"s_waitcnt vmcnt({8*(NS-2)})")
    A.label("s2_ld_loop1")
    A("s_barrier")
    A("s_cmp_eq_u32 s31, 16")
    A("s_cselect_b32 s8, s42, s8")
    A("s_cselect_b32 s9, s43, s9")
    A("s_cselect_b32 s63, 2048, 0")
    A("s_sub_u32 s26, s26, s63")
    A("s_cmp_lg_u32 s31, 32")
    A("s_cbranch_scc1 s2_ld_go")
    wmode(KP)
    A.label("s2_ld_go")
    issue()
    A("s_add_u32 s31, s31, 1")
    A("s_cmp_lg_u32 s31, s64")
    A("s_cbranch_scc1 s2_ld_loop")
    A("s_cmp_eq_u32 s33, 0")
    A("s_cbranch_scc1 s2_ld_tail_p")
    A("s_mov_b32 s86, 0xffff0000")
    def unp(d, s):
        A(f"v_lshlrev_b32 v{d}, 16, v{s}")
        A(f"v_and_b32 v{d+1}, s86, v{s}")
        A(f"v_lshlrev_b32 v{d+2}, 16, v{s+1}")
        A(f"v_and_b32 v{d+3}, s86, v{s+1}")
    unp(116, 96); unp(120, 98)
    rows = list(range(16))
    for b in range(NS - 1):
        cnt = (16 + NS - 2) // (NS - 1)
        for j in rows[:cnt]:
            d = ACC2 + 4 * j
            unp(16, 64 + 2*j)
            for r in range(4): A(f"v_mul_f32 v{16+r}, v{16+r}, v{116+r}")
            A("v_cvt_pk_bf16_f32 v20, v16, v17")
            A("v_cvt_pk_bf16_f32 v21, v18, v19")
            A(f"v_sub_f32 v22, 1.0, v{100+j}")
            unp(16, 20)
            round_bf16(A, 22, 22)
            for r in range(4): A(f"v_mul_f32 v{d+r}, v{100+j}, v{16+r}")
            for r in range(4): A(f"v_fmac_f32 v{d+r}, v22, v{120+r}")
        rows = rows[cnt:]
        A(f"s_waitcnt vmcnt({8*(NS-2-b)})")
        A("s_barrier")
    assert not rows
    srd(A, 8, 58, 8 << 20, WS_T)
    A("s_branch s2_fin")
    A.label("s2_ld_tail_p")
    A("buffer_load_dword v61, v62, s[72:75], s80 offen sc0 sc1")
    for b in range(NS - 3):
        A(f"s_waitcnt vmcnt({8*(NS-2-b) + 1})")
        A("s_barrier")
    A("s_waitcnt vmcnt(0)")
    A("s_barrier")
    def tloads():
        A("s_mov_b32 s67, s66")
        for j in range(16):
            A(f"buffer_load_dwordx4 v[{ACC2+4*j}:{ACC2+4*j+3}], v7, s[68:71], s67 offen sc0 sc1")
            A("s_add_u32 s67, s67, 4096")
    A("v_readfirstlane_b32 s83, v61")
    A("s_and_b32 s83, s83, s81")
    A("s_cbranch_scc0 s2_late")
    tloads()
    A("s_barrier")
    A("s_branch s2_tdone")
    A.label("s2_late")
    A("s_barrier")
    A("s_mov_b32 s82, 0x100000")
    A.label("s2_poll")
    A("buffer_load_dword v61, v62, s[72:75], s80 offen sc0 sc1")
    A("s_waitcnt vmcnt(0)")
    A("v_readfirstlane_b32 s83, v61")
    A("s_and_b32 s83, s83, s81")
    A("s_cbranch_scc1 s2_got")
    A("s_sleep 1")
    A("s_sub_u32 s82, s82, 1")
    A("s_cmp_lg_u32 s82, 0")
    A("s_cbranch_scc1 s2_poll")
    A.label("s2_got")
    tloads()
    A.label("s2_tdone")
    srd(A, 8, 52, 8 << 20)
    A.label("s2_fin")
    A("s_lshl_b32 s63, s62, 12")
    A("s_sub_u32 s28, s29, s63")
    A(f"s_add_u32 s29, s28, {SLOT}")
    A(f"s_cmp_eq_u32 s29, {NS*SLOT}")
    A("s_cselect_b32 s29, 0, s29")
    A("s_cmp_lt_u32 s62, 2")
    A("s_cselect_b32 s28, s28, s29")
    A("s_and_b32 s63, s62, 1")
    A("s_lshl_b32 s63, s63, 14")
    A("s_add_u32 s28, s28, s63")
    A("v_lshlrev_b32 v8, 4, v6")
    A("v_lshl_add_u32 v8, v5, 13, v8")
    A("v_add_u32 v8, s28, v8")
    for j in range(1, 8): A(f"v_xor_b32 v{8+j}, {16*j}, v8")
    A("s_barrier")
    stamp(A, 4, 58, 1, "s62")
    for j in range(16):
        A(f"ds_read_b128 v[{64+4*j}:{67+4*j}], v{8 + (j & 7)} offset:{j*512}")
    A("s_mov_b32 s67, s66")
    A("s_cmp_eq_u32 s33, 0")
    A("s_cbranch_scc1 s2_fin_p")
    for j in range(16):
        A(f"s_waitcnt lgkmcnt({15-j})")
        d = ACC2 + 4*j
        for r in range(4): A(f"v_add_f32 v{d+r}, v{d+r}, v{64+4*j+r}")
        A(f"buffer_store_dwordx4 v[{d}:{d+3}], v7, s[8:11], s67 offen sc0 sc1")
        A("s_add_u32 s67, s67, 4096")
    A("s_waitcnt vmcnt(0)")
    A("s_barrier")
    A("s_cmp_lg_u32 s62, 0")
    A("s_cbranch_scc1 s2_done")
    A("v_mov_b32 v61, s81")
    A("s_mov_b64 exec, 1")
    A("buffer_atomic_or v61, v62, s[72:75], s80 offen sc1")
    stamp(A, 5, 58, 1, "s62")
    A("s_endpgm")
    A.label("s2_fin_p")
    for j in range(16):
        A(f"s_waitcnt vmcnt(15) lgkmcnt({15-j})")
        d = ACC2 + 4*j
        for r in range(4): A(f"v_add_f32 v{d+r}, v{d+r}, v{64+4*j+r}")
        A(f"buffer_store_dwordx4 v[{d}:{d+3}], v7, s[8:11], s67 offen")
        A("s_add_u32 s67, s67, 4096")
    stamp(A, 5, 58, 1, "s62")
    A.label("s2_done")
    A("s_endpgm")
```

```python
import struct, sys, os
EXP = os.environ.get("EXP", "").split(",")

NAME = "gated_mix__ssm_conv_s5__mixer_channel_mlp__prompt"
KA = dict(x=0, lre=8, lim=16, bre=24, bim=32, cre=40, cim=48, logdt=56, dskip=64, bx=72,
          w1=80, b1=88, w2=96, b2=104, gw=112, out=120, dbg=128, ws=136)
WS_Y = 0
WS_G = 4 << 20
WS_E = 5 << 20
WS_MR = (4 << 20) + 16384
WS_CS = (4 << 20) + 65536
WS_H = 8 << 20
WS_T = 32 << 20
HP = int(os.environ.get("HP", "11264"))
H_BYTES = 2048 * HP

def f32(x):
    return "0x%08x" % struct.unpack("<I", struct.pack("<f", x))[0]

class Asm:
    def __init__(self):
        self.lines = []
        self.cnt = 0
    def __call__(self, s):
        self.lines.append("    " + s)
    def label(self, s):
        self.lines.append(s + ":")
    def newlabel(self, p="L"):
        self.cnt += 1
        return f"{p}_{self.cnt}"
    def comment(self, s):
        self.lines.append("    ; " + s)
    def text(self):
        return "\n".join(self.lines) + "\n"

def vr(a, n=1):
    return f"v{a}" if n == 1 else f"v[{a}:{a+n-1}]"
def sr(a, n=1):
    return f"s{a}" if n == 1 else f"s[{a}:{a+n-1}]"

def srd(A, d, lo, nbytes, off=0):
    if off:
        A(f"s_add_u32 s{d}, s{lo}, {off}")
        A(f"s_addc_u32 s{d+1}, s{lo+1}, 0")
    else:
        A(f"s_mov_b32 s{d}, s{lo}")
        A(f"s_mov_b32 s{d+1}, s{lo+1}")
    A(f"s_mov_b32 s{d+2}, {nbytes}")
    A(f"s_mov_b32 s{d+3}, 0x00020000")

def stamp(A, idx, wsreg, kern=0, wavereg="s32", rg=(253, 254, 255)):
    if "stamp" not in EXP:
        return
    lab = A.newlabel("stamp")
    A(f"s_cmp_lg_u32 {wavereg}, 0")
    A(f"s_cbranch_scc1 {lab}")
    A("s_memrealtime s[92:93]")
    A("s_memtime s[90:91]")
    A(f"s_add_u32 s96, s{wsreg}, {(48 << 20) + kern * 65536}")
    A(f"s_addc_u32 s97, s{wsreg+1}, 0")
    A("s_mov_b32 s98, 65536")
    A("s_mov_b32 s99, 0x00020000")
    A("s_lshl_b32 s94, s2, 5")
    A("s_waitcnt lgkmcnt(0)")
    A(f"v_mov_b32 v{rg[1]}, s92")
    A(f"v_mov_b32 v{rg[2]}, 0")
    A(f"buffer_store_dword v{rg[1]}, v{rg[2]}, s[96:99], s94 offen offset:{idx*4}")
    A(f"v_mov_b32 v{rg[0]}, s90")
    A("s_add_u32 s94, s94, 32768")
    A(f"buffer_store_dword v{rg[0]}, v{rg[2]}, s[96:99], s94 offen offset:{idx*4}")
    A.label(lab)

def kernel_head(A, label):
    A.lines.append(f".globl {label}")
    A.lines.append(".p2align 8")
    A.lines.append(f".type {label},@function")
    A.label(label)

def kd(label, vgpr, sgpr):
    acc = (vgpr + 3) // 4 * 4
    return f""".amdhsa_kernel {label}
  .amdhsa_next_free_vgpr {vgpr}
  .amdhsa_next_free_sgpr {sgpr}
  .amdhsa_accum_offset {acc}
  .amdhsa_group_segment_fixed_size 0
  .amdhsa_kernarg_size 144
  .amdhsa_user_sgpr_count 2
  .amdhsa_user_sgpr_kernarg_segment_ptr 1
  .amdhsa_system_sgpr_workgroup_id_x 1
.end_amdhsa_kernel
"""

def wave_sum(A, regs, stmp):
    for mode in ("quad_perm:[1,0,3,2]", "quad_perm:[2,3,0,1]", "row_half_mirror", "row_mirror"):
        A("s_nop 1")
        for r in regs:
            A(f"v_add_f32_dpp v{r}, v{r}, v{r} {mode} row_mask:0xf bank_mask:0xf")
    for r in regs:
        A("s_nop 1")
        for i in range(4):
            A(f"v_readlane_b32 s{stmp+i}, v{r}, {16*i}")
        A("s_nop 1")
        A(f"v_mov_b32 v{r}, s{stmp}")
        A(f"v_add_f32 v{r}, s{stmp+1}, v{r}")
        A(f"v_add_f32 v{r}, s{stmp+2}, v{r}")
        A(f"v_add_f32 v{r}, s{stmp+3}, v{r}")

def round_bf16(A, d, s):
    A(f"v_cvt_pk_bf16_f32 v{d}, v{s}, v{s}")
    A(f"v_lshlrev_b32 v{d}, 16, v{d}")

def gen_pre(A):
    kernel_head(A, "pre_kernel")
    A("s_cmp_ge_u32 s2, 512")
    A("s_cbranch_scc1 pre_done")
    A(f"s_load_dwordx2 s[4:5], s[0:1], {KA['x']}")
    A(f"s_load_dwordx2 s[6:7], s[0:1], {KA['gw']}")
    A(f"s_load_dwordx2 s[8:9], s[0:1], {KA['ws']}")
    A(f"s_load_dwordx2 s[36:37], s[0:1], {KA['w1']}")
    A(f"s_load_dwordx4 s[44:47], s[0:1], {KA['bre']}")
    A("v_lshrrev_b32 v1, 6, v0")
    A("v_and_b32 v2, 63, v0")
    A("v_readfirstlane_b32 s10, v1")
    A("v_lshlrev_b32 v3, 4, v2")
    A("s_lshl_b32 s11, s2, 2")
    A("s_add_u32 s11, s11, s10")
    A("s_lshl_b32 s12, s11, 11")
    A("s_waitcnt lgkmcnt(0)")
    srd(A, 16, 4, 4 << 20)
    srd(A, 20, 6, 2048)
    srd(A, 24, 8, 4 << 20, WS_Y)
    srd(A, 28, 8, 8192, WS_G)
    stamp(A, 0, 8, 2, "s10")
    A("buffer_load_dwordx4 v[4:7], v3, s[16:19], s12 offen")
    A("buffer_load_dwordx4 v[8:11], v3, s[16:19], s12 offen offset:1024")
    A("buffer_load_dwordx4 v[12:15], v3, s[20:23], 0 offen")
    A("buffer_load_dwordx4 v[16:19], v3, s[20:23], 0 offen offset:1024")
    if "nopf" not in EXP:
        A("v_lshlrev_b32 v56, 7, v2")
        A("s_lshl_b32 s15, s11, 13")
        A("s_cmp_lt_u32 s11, 896")
        A("s_cbranch_scc0 pre_pf1")
        srd(A, 40, 36, 1024 * 7168)
        A("buffer_load_dword v57, v56, s[40:43], s15 offen")
        A("s_branch pre_pf3")
        A.label("pre_pf1")
        A("s_sub_u32 s15, s15, %d" % (896 * 8192))
        A("s_cmp_lt_u32 s11, 1152")
        A("s_cbranch_scc0 pre_pf2")
        srd(A, 40, 44, 2 << 20)
        A("buffer_load_dword v57, v56, s[40:43], s15 offen")
        A("s_branch pre_pf3")
        A.label("pre_pf2")
        A("s_sub_u32 s15, s15, %d" % (256 * 8192))
        A("s_cmp_lt_u32 s11, 1408")
        A("s_cbranch_scc0 pre_pf4")
        srd(A, 40, 46, 2 << 20)
        A("buffer_load_dword v57, v56, s[40:43], s15 offen")
        A("s_branch pre_pf3")
        A.label("pre_pf4")
        A("buffer_load_dword v57, v3, s[20:23], 0 offen")
        A.label("pre_pf3")
    A("s_mov_b32 s13, 0xffff0000")
    A("s_waitcnt vmcnt(%d)" % (2 if "nopf" in EXP else 3))
    for i in range(8):
        A(f"v_lshlrev_b32 v{20+2*i}, 16, v{4+i}")
        A(f"v_and_b32 v{21+2*i}, s13, v{4+i}")
    A("s_waitcnt vmcnt(%d)" % (0 if "nopf" in EXP else 1))
    for i in range(8):
        A(f"v_lshlrev_b32 v{36+2*i}, 16, v{12+i}")
        A(f"v_and_b32 v{37+2*i}, s13, v{12+i}")
    for i in range(16):
        A(f"v_mul_f32 v{36+i}, v{20+i}, v{36+i}")
    for i in range(8):
        A(f"v_cvt_pk_bf16_f32 v{12+i}, v{36+2*i}, v{37+2*i}")
    for i in range(8):
        A(f"v_lshlrev_b32 v{36+2*i}, 16, v{12+i}")
        A(f"v_and_b32 v{37+2*i}, s13, v{12+i}")
    A("v_add_f32 v52, v20, v21")
    A("v_add_f32 v53, v36, v37")
    for i in range(2, 16):
        A(f"v_add_f32 v52, v52, v{20+i}")
        A(f"v_add_f32 v53, v53, v{36+i}")
    wave_sum(A, [52, 53], 32)
    A(f"v_mul_f32 v52, {f32(1.0/1024)}, v52")
    for i in range(16):
        A(f"v_sub_f32 v{36+i}, v{20+i}, v52")
    A("v_mul_f32 v54, v36, v36")
    for i in range(1, 16):
        A(f"v_fmac_f32 v54, v{36+i}, v{36+i}")
    wave_sum(A, [54], 32)
    A(f"v_mul_f32 v54, {f32(1.0/1024)}, v54")
    round_bf16(A, 54, 54)
    A(f"v_add_f32 v54, {f32(1e-5)}, v54")
    round_bf16(A, 54, 54)
    A("v_sqrt_f32 v54, v54")
    A("s_nop 0")
    round_bf16(A, 54, 54)
    A("v_rcp_f32 v54, v54")
    round_bf16(A, 52, 52)
    for i in range(16):
        A(f"v_sub_f32 v{36+i}, v{20+i}, v52")
    for i in range(8):
        A(f"v_cvt_pk_bf16_f32 v{12+i}, v{36+2*i}, v{37+2*i}")
    for i in range(8):
        A(f"v_lshlrev_b32 v{36+2*i}, 16, v{12+i}")
        A(f"v_and_b32 v{37+2*i}, s13, v{12+i}")
    for i in range(16):
        A(f"v_mul_f32 v{36+i}, v{36+i}, v54")
    for i in range(8):
        A(f"v_cvt_pk_bf16_f32 v{4+i}, v{36+2*i}, v{37+2*i}")
    A("buffer_store_dwordx4 v[4:7], v3, s[24:27], s12 offen")
    A("buffer_store_dwordx4 v[8:11], v3, s[24:27], s12 offen offset:1024")
    round_bf16(A, 53, 53)
    A(f"v_mul_f32 v53, {f32(-1.4426950408889634)}, v53")
    A("v_exp_f32 v53, v53")
    A("s_nop 0")
    A("v_add_f32 v53, 1.0, v53")
    A("v_rcp_f32 v53, v53")
    A("s_nop 0")
    round_bf16(A, 53, 53)
    A("s_lshl_b32 s14, s11, 2")
    A("v_mov_b32 v55, 0")
    A("v_cmp_eq_u32 vcc, 0, v2")
    A("s_and_saveexec_b64 s[34:35], vcc")
    A("buffer_store_dword v53, v55, s[28:31], s14 offen")
    if "stamp" in EXP:
        A("s_mov_b64 exec, -1")
        A("s_waitcnt vmcnt(0)")
        stamp(A, 1, 8, 2, "s10")
    A.label("pre_done")
    A("s_endpgm")

def interleave(main, side):
    out = []
    n, m = len(main), len(side)
    j = 0
    for i, x in enumerate(main):
        out.append(x)
        if j < m:
            out.extend(side[j]); j += 1
    while j < m:
        out.extend(side[j]); j += 1
    return out

SLOT1 = 61440
BOFF1 = 32768

def lam_consts(A, vld, vlre, vlim, out, t):
    lr, li, cr, ci = out
    t0, t1, t2, t3, t4, t5 = t
    A(f"v_mul_f32 v{t0}, {f32(1.4426950408889634)}, v{vld}")
    A(f"v_exp_f32 v{t0}, v{t0}")
    A("s_nop 0")
    round_bf16(A, t0, t0)
    A(f"v_mul_f32 v{t1}, v{t0}, v{vlre}")
    A(f"v_mul_f32 v{t2}, v{t0}, v{vlim}")
    A(f"v_mul_f32 v{t1}, {f32(1.4426950408889634)}, v{t1}")
    A(f"v_exp_f32 v{t1}, v{t1}")
    A(f"v_mul_f32 v{t2}, {f32(0.15915494309189535)}, v{t2}")
    A(f"v_rndne_f32 v{t3}, v{t2}")
    A(f"v_sub_f32 v{t2}, v{t2}, v{t3}")
    A(f"v_cos_f32 v{t3}, v{t2}")
    A(f"v_sin_f32 v{t4}, v{t2}")
    A("s_nop 0")
    A(f"v_mul_f32 v{lr}, v{t1}, v{t3}")
    A(f"v_mul_f32 v{li}, v{t1}, v{t4}")
    if cr is None:
        return
    A(f"v_add_f32 v{t0}, -1.0, v{lr}")
    A(f"v_mul_f32 v{t1}, v{vlre}, v{vlre}")
    A(f"v_fmac_f32 v{t1}, v{vlim}, v{vlim}")
    A(f"v_rcp_f32 v{t1}, v{t1}")
    A(f"v_mul_f32 v{t2}, v{t0}, v{vlre}")
    A(f"v_fmac_f32 v{t2}, v{li}, v{vlim}")
    A(f"v_mul_f32 v{t3}, v{li}, v{vlre}")
    A(f"v_fma_f32 v{t3}, -v{t0}, v{vlim}, v{t3}")
    A(f"v_mul_f32 v{cr}, v{t2}, v{t1}")
    A(f"v_mul_f32 v{ci}, v{t3}, v{t1}")

def csquare(A, r, i, t):
    A(f"v_mul_f32 v{t}, v{i}, v{i}")
    A(f"v_mul_f32 v{i}, v{r}, v{i}")
    A(f"v_fma_f32 v{r}, v{r}, v{r}, -v{t}")
    A(f"v_add_f32 v{i}, v{i}, v{i}")

def gen_s1(A):
    kernel_head(A, "s1_kernel")
    A("s_cmp_ge_u32 s2, 256")
    A("s_cbranch_scc1 s1_done")
    A(f"s_load_dwordx2 s[36:37], s[0:1], {KA['x']}")
    A(f"s_load_dwordx4 s[40:43], s[0:1], {KA['lre']}")
    A(f"s_load_dwordx4 s[44:47], s[0:1], {KA['bre']}")
    A(f"s_load_dwordx2 s[48:49], s[0:1], {KA['logdt']}")
    A(f"s_load_dwordx4 s[52:55], s[0:1], {KA['w1']}")
    A(f"s_load_dwordx4 s[56:59], s[0:1], {KA['dbg']}")
    A("v_lshrrev_b32 v1, 6, v0")
    A("v_and_b32 v2, 63, v0")
    A("v_readfirstlane_b32 s32, v1")
    A("s_and_b32 s3, s2, 7")
    A("s_lshr_b32 s33, s2, 3")
    A("s_and_b32 s34, s3, 1")
    A("s_mov_b32 s87, s34")
    A("s_lshl_b32 s34, s34, 2")
    A("s_and_b32 s35, s33, 3")
    A("s_add_u32 s34, s34, s35")
    A("s_lshr_b32 s35, s3, 1")
    A("s_lshl_b32 s35, s35, 2")
    A("s_bfe_u32 s3, s33, 0x20002")
    A("s_add_u32 s35, s35, s3")
    A("s_lshr_b32 s33, s33, 4")
    A("v_lshrrev_b32 v3, 3, v2")
    A("v_and_b32 v4, 7, v2")
    A("v_lshrrev_b32 v5, 1, v3")
    A("v_xor_b32 v4, v4, v5")
    A("v_lshlrev_b32 v4, 4, v4")
    A("v_and_b32 v6, 15, v2")
    A("v_lshrrev_b32 v7, 4, v2")
    A("v_lshrrev_b32 v8, 1, v6")
    A("v_xor_b32 v8, v8, v7")
    A("v_lshlrev_b32 v8, 4, v8")
    A("v_lshl_add_u32 v8, v6, 7, v8")
    A("s_lshr_b32 s60, s32, 1")
    A("s_and_b32 s61, s32, 1")
    A("s_lshl_b32 s62, s60, 13")
    A("v_add_u32 v104, s62, v8")
    A("v_xor_b32 v105, 64, v104")
    A(f"v_add_u32 v106, {SLOT1}, v104")
    A(f"v_add_u32 v107, {SLOT1}, v105")
    A("s_lshl_b32 s29, s32, 12")
    A("s_waitcnt lgkmcnt(0)")
    srd(A, 12, 58, H_BYTES, WS_H)
    stamp(A, 0, 58)
    A("s_cmp_eq_u32 s33, 0")
    A("s_cbranch_scc1 s1_ssm")
    gen_s1_mlp(A)
    A.label("s1_ssm")
    gen_s1_ssm(A)
    A.label("s1_done")
    A("s_endpgm")

def s1_mainloop(A, tag, reads, mfmas, dma, nk=16, hook=None, extra=None, tail0=None, tail1=None, tail2=None, wait=None):
    if "nomfma" in EXP:
        mfmas = lambda st: ["s_nop 0"] * 16
    if "nodma" in EXP:
        dma = lambda slot: []
    if "noread" in EXP:
        reads = lambda a, b, c: []
    def half_a(slot, ex):
        A("s_waitcnt lgkmcnt(0)")
        for x in interleave(mfmas(0), [[r] for r in reads(1, slot, 1)]):
            A(x)
        if ex and extra: extra(0)
        if wait: wait(slot, ex)
        else: A("s_waitcnt vmcnt(0) lgkmcnt(0)")
        A("s_barrier")
    def half_b(slot, do_dma, do_read, ex, more=None):
        side = []
        rd = [[r] for r in reads(0, slot ^ 1, 0)] if do_read else []
        dm = dma(slot) if do_dma else []
        if more: dm = dm + more
        while rd or dm:
            if "neworder" not in EXP:
                if rd: side.append(rd.pop(0))
                if rd: side.append(rd.pop(0))
                if dm: side.append(dm.pop(0))
            else:
                if dm: side.append(dm.pop(0))
                if rd: side.append(rd.pop(0))
        for x in interleave(mfmas(1), side):
            A(x)
        if ex and extra: extra(1)
    A(f"s_mov_b32 s31, {nk//2 - 1}")
    A.label(f"{tag}_loop")
    if "bodyst" in EXP:
        lab = A.newlabel("bst")
        A("s_cmp_lg_u32 s32, 2")
        A(f"s_cbranch_scc1 {lab}")
        A("s_memtime s[90:91]")
        A(f"s_add_u32 s96, s58, {(48 << 20) + 3 * 65536}")
        A("s_addc_u32 s97, s59, 0")
        A("s_mov_b32 s98, 65536")
        A("s_mov_b32 s99, 0x00020000")
        A("s_lshl_b32 s94, s2, 5")
        A("s_lshl_b32 s95, s31, 2")
        A("s_add_u32 s94, s94, s95")
        A("s_waitcnt lgkmcnt(0)")
        A("v_mov_b32 v1, s90")
        A("v_mov_b32 v3, 0")
        A("buffer_store_dword v1, v3, s[96:99], s94 offen")
        A.label(lab)
    if hook: hook()
    half_a(0, True); half_b(0, True, True, True)
    half_a(1, True); half_b(1, True, True, True)
    A("s_sub_u32 s31, s31, 1")
    A("s_cmp_lg_u32 s31, 0")
    A(f"s_cbranch_scc1 {tag}_loop")
    if tail0: tail0()
    half_a(0, False)
    half_b(0, False, True, False, tail1() if tail1 else None)
    half_a(1, False)
    half_b(1, False, False, False, tail2() if tail2 else None)

def gen_s1_mlp(A):
    A.comment("---------------- MLP-up role ----------------")
    srd(A, 4, 36, 4 << 20)
    srd(A, 8, 52, 1024 * 7168)
    srd(A, 16, 54, 7168)
    A("v_lshl_add_u32 v112, v3, 11, v4")
    A("s_lshl_b32 s84, s87, 10")
    A("v_add_u32 v112, s84, v112")
    A("v_xor_b32 v113, 64, v112")
    A("s_lshl_b32 s20, s34, 8")
    A("s_lshl_b32 s63, s32, 5")
    A("s_add_u32 s20, s20, s63")
    A("s_lshl_b32 s20, s20, 11")
    for q in range(1, 4):
        A(f"s_add_u32 s{20+q}, s20, {q*8*2048}")
    A("v_lshrrev_b32 v9, 2, v2")
    A("v_and_b32 v10, 3, v2")
    A("v_lshrrev_b32 v11, 5, v2")
    A("v_lshlrev_b32 v11, 1, v11")
    A("v_xor_b32 v10, v10, v11")
    A("v_lshlrev_b32 v10, 4, v10")
    A("s_movk_i32 s63, 7168")
    A("v_mul_lo_u32 v9, v9, s63")
    A("v_add_u32 v114, v9, v10")
    A("s_mul_i32 s85, s87, 512*7168")
    A("v_add_u32 v114, s85, v114")
    A("s_lshl_b32 s84, s84, 1")
    A("s_lshl_b32 s85, s85, 1")
    A("s_mul_i32 s24, s60, 16*7168")
    A("s_mul_i32 s64, s35, 448")
    A("s_add_u32 s24, s24, s64")
    A("s_lshl_b32 s63, s61, 8")
    A("s_add_u32 s24, s24, s63")
    for q in range(1, 4):
        A(f"s_add_u32 s{24+q}, s24, {q*64}")
    A("s_mul_i32 s30, s60, 7")
    A("s_lshl_b32 s63, s61, 2")
    A("s_add_u32 s30, s30, s63")
    A("s_lshl_b32 s30, s30, 10")
    A(f"s_add_u32 s30, s30, {BOFF1}")
    A("s_mov_b32 s28, 64*7168")
    def dma(slot):
        g = []
        for q in range(4):
            g.append([f"s_add_u32 m0, s29, {slot*SLOT1 + q*1024}", "s_nop 0",
                      f"buffer_load_dwordx4 v{112 + (q & 1)}, s[4:7], s{20+q} offen lds"])
        for q in range(3):
            g.append([f"s_add_u32 m0, s30, {slot*SLOT1 + q*1024}", "s_nop 0",
                      f"buffer_load_dwordx4 v114, s[8:11], s{24+q} offen lds"])
        lab = A.newlabel("mlp_skip")
        g.append(["s_cmp_lg_u32 s61, 0", f"s_cbranch_scc1 {lab}",
                  f"s_add_u32 m0, s30, {slot*SLOT1 + 3*1024}", "s_nop 0",
                  f"buffer_load_dwordx4 v114, s[8:11], s27 offen lds", f"{lab}:"])
        g.append(["v_add_u32 v112, 128, v112", "v_add_u32 v113, 128, v113", "v_add_u32 v114, s28, v114"])
        return g
    for slot in range(2):
        for g in dma(slot):
            for x in g: A(x)
    A("v_lshrrev_b32 v9, 1, v7")
    A("s_movk_i32 s63, 7168")
    A("v_mul_lo_u32 v9, v9, s63")
    A("v_and_b32 v10, 1, v7")
    A("v_lshrrev_b32 v11, 2, v6")
    A("v_lshl_add_u32 v11, v10, 3, v11")
    A("v_lshl_add_u32 v9, v11, 6, v9")
    A("v_and_b32 v11, 3, v6")
    A("v_lshl_add_u32 v9, v11, 3, v9")
    A("v_lshl_add_u32 v9, v10, 5, v9")
    A("s_lshl_b32 s63, s61, 5")
    A("v_xor_b32 v108, s63, v9")
    A("v_xor_b32 v109, 32, v108")
    A("s_mul_i32 s63, s61, 3072")
    A(f"s_add_u32 s63, s63, {BOFF1}")
    A("v_add_u32 v108, s63, v108")
    A("s_lshl_b32 s63, s61, 12")
    A(f"s_add_u32 s63, s63, {BOFF1}")
    A("v_add_u32 v109, s63, v109")
    A(f"v_add_u32 v110, {SLOT1}, v108")
    A(f"v_add_u32 v111, {SLOT1}, v109")
    A("s_lshl_b32 s63, s34, 4")
    A("s_add_u32 s63, s63, s35")
    A("s_cmp_ge_u32 s32, 3")
    A("s_cselect_b32 s67, 2, 1")
    A("s_add_u32 s67, s67, s32")
    A("s_mul_i32 s67, s67, 128*7168")
    A("s_lshl_b32 s66, s63, 13")
    A("s_add_u32 s66, s66, s67")
    A("s_cmp_lt_u32 s63, 112")
    A("s_cselect_b32 s66, s66, 0")
    A("s_cmp_lt_u32 s32, 6")
    A("s_cselect_b32 s66, s66, 0")
    A("v_lshlrev_b32 v9, 7, v2")
    A("buffer_load_dword v10, v9, s[8:11], s66 offen")
    ACC = 128
    def acc(t, i): return ACC + (t * 4 + i) * 4
    CSR = [116, 120, 124, 240, 244, 248, 252]
    A("s_mov_b32 s65, 0xffff0000")
    for r in range(112): A(f"v_mov_b32 v{ACC+r}, 0")
    for t in range(7):
        for r in range(4): A(f"v_mov_b32 v{CSR[t]+r}, 0")
    for r in range(4): A(f"v_mov_b32 v{12+r}, 0x3f803f80")
    srd(A, 68, 58, 8 * 3584 * 4, WS_CS)
    srd(A, 72, 56, 256)
    srd(A, 76, 58, 16384, WS_MR)
    A("s_and_b32 s86, s34, 3")
    A("s_sub_u32 s86, 7, s86")
    A("s_sub_u32 s88, s86, 1")
    A("s_sub_u32 s89, s86, 2")
    A("s_cmp_eq_u32 s60, 0")
    A("s_cselect_b32 s86, s86, 99")
    A("s_cselect_b32 s88, s88, 99")
    A("s_cmp_eq_u32 s32, 0")
    A("s_cselect_b32 s89, s89, 99")
    A("s_cselect_b32 s83, 1, 99")
    A("s_mul_i32 s80, s61, 448")
    A("s_lshl_b32 s81, s64, 1")
    A("s_add_u32 s80, s80, s81")
    A("s_waitcnt vmcnt(8)")
    YF = [16, 60]; WF = [32, 76]
    def reads(st, slot, sub):
        out = []
        for t in range(7):
            base = 108 + 2 * slot + (t & 1)
            off = (2 * sub * 7 + (t >> 1)) * 1024
            d = WF[st] + 4 * t
            out.append(f"ds_read_b64_tr_b16 v[{d}:{d+1}], v{base} offset:{off}")
            out.append(f"ds_read_b64_tr_b16 v[{d+2}:{d+3}], v{base} offset:{off+256}")
            if t < 4:
                y = YF[st] + 4 * t
                out.append(f"ds_read_b128 v[{y}:{y+3}], v{104 + 2*slot + sub} offset:{t*2048}")
        return out
    def mfmas(st):
        out = []
        for t in range(7):
            for i in range(4):
                a = acc(t, i)
                out.append(f"v_mfma_f32_16x16x32_bf16 v[{a}:{a+3}], v[{WF[st]+4*t}:{WF[st]+4*t+3}], v[{YF[st]+4*i}:{YF[st]+4*i+3}], v[{a}:{a+3}]")
        return out
    A("s_barrier")
    stamp(A, 1, 58, rg=(1, 3, 4))
    for x in reads(0, 0, 0): A(x)
    def extra(st):
        lab = A.newlabel("mlp_cs")
        A("s_cmp_lg_u32 s31, s86")
        A(f"s_cbranch_scc1 {lab}")
        for t in range(7):
            a = CSR[t]
            A(f"v_mfma_f32_16x16x32_bf16 v[{a}:{a+3}], v[{WF[st]+4*t}:{WF[st]+4*t+3}], v[12:15], v[{a}:{a+3}]")
        A.label(lab)
    def hook():
        A("s_cmp_lg_u32 s31, 4")
        A("s_cbranch_scc1 mlp_h1")
        A("v_subrev_u32 v112, s84, v112")
        A("v_subrev_u32 v113, s84, v113")
        A("v_subrev_u32 v114, s85, v114")
        A.label("mlp_h1")
        A("s_cmp_lg_u32 s31, s88")
        A("s_cbranch_scc1 mlp_h2")
        A("s_nop 7"); A("s_nop 7")
        A("s_mul_i32 s63, s34, 3584*4")
        A("s_add_u32 s63, s63, s80")
        A("v_lshlrev_b32 v9, 4, v7")
        A("s_mov_b32 exec_lo, 0x00010001")
        A("s_mov_b32 exec_hi, 0x00010001")
        for t in range(7):
            A(f"buffer_store_dwordx4 v[{CSR[t]}:{CSR[t]+3}], v9, s[68:71], s63 offen offset:{64*t} sc0 sc1")
        A("s_mov_b64 exec, -1")
        A.label("mlp_h2")
        A("s_cmp_lg_u32 s31, s89")
        A("s_cbranch_scc1 mlp_h3")
        A("s_lshl_b32 s63, s35, 2")
        A("v_mov_b32 v9, 1")
        A("v_mov_b32 v10, 0")
        A("s_mov_b64 exec, 1")
        A("buffer_atomic_add v9, v10, s[72:75], s63 offen offset:128 sc1")
        A("s_mov_b64 exec, -1")
        A.label("mlp_h3")
        A("s_cmp_lg_u32 s31, s83")
        A("s_cbranch_scc1 mlp_h4")
        flagloads()
        A.label("mlp_h4")
    def flagloads():
        A("v_mov_b32 v10, 0")
        A("s_lshl_b32 s63, s35, 2")
        A("s_lshl_b32 s66, s34, 2")
        A("buffer_load_dword v8, v10, s[72:75], s63 offen offset:128 sc0 sc1")
        A("buffer_load_dword v9, v10, s[72:75], s66 offen offset:192 sc0 sc1")
    def tail0():
        A("s_cmp_lg_u32 s32, 0")
        A("s_cbranch_scc1 mlp_ready")
        A("s_mov_b32 s81, 0x100000")
        A.label("mlp_poll")
        A("v_readfirstlane_b32 s82, v8")
        A("v_readfirstlane_b32 s83, v9")
        A("s_lshl_b32 s82, s82, 8")
        A("s_or_b32 s82, s82, s83")
        A("s_cmpk_eq_u32 s82, 0x810")
        A("s_cbranch_scc1 mlp_ready")
        A("s_sleep 16")
        flagloads()
        A("s_waitcnt vmcnt(0)")
        A("s_sub_u32 s81, s81, 1")
        A("s_cmp_lg_u32 s81, 0")
        A("s_cbranch_scc1 mlp_poll")
        A.label("mlp_ready")
    XB = 2 * SLOT1
    def tail1():
        A("v_lshlrev_b32 v112, 4, v2")
        A("s_mul_i32 s63, s32, 3584*4")
        A("s_lshl_b32 s66, s64, 1")
        A("s_add_u32 s63, s63, s66")
        A("v_lshlrev_b32 v113, 2, v2")
        A("s_lshl_b32 s66, s34, 11")
        A("s_lshl_b32 s67, s32, 8")
        A("s_add_u32 s66, s66, s67")
        A("v_lshlrev_b32 v114, 3, v7")
        return [[f"buffer_load_dwordx4 v[8:11], v112, s[68:71], s63 offen sc0 sc1"],
                [f"buffer_load_dword v12, v113, s[76:79], s66 offen sc0 sc1"]]
    def tailw():
        A("s_mul_i32 s63, s32, 1040")
        A(f"s_add_u32 s63, s63, {XB}")
        A("v_add_u32 v112, s63, v112")
        A(f"s_add_u32 s67, s67, {XB + 8448}")
        A("v_add_u32 v113, s67, v113")
        A("s_waitcnt vmcnt(0)")
        A("ds_write_b128 v112, v[8:11]")
        A("ds_write_b32 v113, v12")
        A("v_and_b32 v112, 7, v6")
        A("s_movk_i32 s63, 1040")
        A("v_mul_lo_u32 v112, v112, s63")
        A("v_lshl_add_u32 v112, v7, 4, v112")
        A("s_mul_i32 s63, s61, 448")
        A(f"s_add_u32 s63, s63, {XB}")
        A("v_add_u32 v112, s63, v112")
        A("s_lshl_b32 s63, s60, 9")
        A(f"s_add_u32 s63, s63, {XB + 8448}")
        A("v_lshlrev_b32 v113, 3, v6")
        A("v_add_u32 v113, s63, v113")
        A("s_lshr_b32 s66, s80, 1")
        A("s_waitcnt lgkmcnt(0)")
    def tail2():
        g = []
        for t in range(7):
            g.append([f"buffer_load_dwordx2 v[{16+2*t}:{17+2*t}], v114, s[16:19], s66 offen offset:{32*t}",
                      f"ds_read_b128 v[{CSR[t]}:{CSR[t]+3}], v112 offset:{64*t}"])
        g.append([f"ds_read_b64 v[{8+2*i}:{9+2*i}], v113 offset:{128*i}" for i in range(4)])
        g.append([]); g.append(["s_waitcnt lgkmcnt(0)"])
        k = 0
        L = []
        for mode in ("quad_perm:[1,0,3,2]", "quad_perm:[2,3,0,1]", "row_half_mirror"):
            for t in range(7):
                L += [f"v_add_f32_dpp v{CSR[t]+r}, v{CSR[t]+r}, v{CSR[t]+r} {mode} row_mask:0xf bank_mask:0xf" for r in range(4)]
        while L:
            g.append(L[:5]); L = L[5:]
        return g
    def wait(slot, inloop):
        if slot == 1 and not inloop:
            tailw()
        elif slot == 1:
            A("s_waitcnt vmcnt(0) lgkmcnt(0)")
        elif inloop:
            A("s_cmp_eq_u32 s31, s88")
            A("s_cbranch_scc1 mlp_w1")
            A("s_waitcnt vmcnt(2)")
            A("s_cmp_eq_u32 s31, s83")
            A("s_cbranch_scc1 mlp_w1")
            A("s_waitcnt vmcnt(1)")
            A("s_cmp_eq_u32 s31, s89")
            A("s_cbranch_scc1 mlp_w1")
            A("s_cmp_eq_u32 s31, 7")
            A("s_cbranch_scc1 mlp_w1")
            A("s_waitcnt vmcnt(0)")
            A.label("mlp_w1")
            A("s_waitcnt vmcnt(7) lgkmcnt(0)")
        else:
            A("s_waitcnt vmcnt(0) lgkmcnt(0)")
    s1_mainloop(A, "mlp", reads, mfmas, dma, hook=hook, extra=extra, tail0=tail0, tail1=tail1, tail2=tail2, wait=wait)
    stamp(A, 2, 58, rg=(1, 3, 4))
    for i in range(4):
        A(f"v_mov_b32 v{105+2*i}, v{9+2*i}")
        A(f"v_mul_f32 v{112+i}, -v{8+2*i}, v{9+2*i}")
    A("s_waitcnt vmcnt(0)")
    for t in range(7):
        A(f"v_lshlrev_b32 v{64+4*t}, 16, v{16+2*t}")
        A(f"v_and_b32 v{65+4*t}, s65, v{16+2*t}")
        A(f"v_lshlrev_b32 v{66+4*t}, 16, v{17+2*t}")
        A(f"v_and_b32 v{67+4*t}, s65, v{17+2*t}")

    A(f"s_movk_i32 s63, {HP}")
    A("v_mul_lo_u32 v9, v6, s63")
    A("v_lshl_add_u32 v9, v7, 3, v9")
    A("s_lshl_b32 s66, s34, 8")
    A("s_lshl_b32 s67, s60, 6")
    A("s_add_u32 s66, s66, s67")
    A(f"s_mul_i32 s66, s66, {HP}")
    A("s_mul_i32 s67, s61, 224")
    A("s_add_u32 s66, s66, s67")
    A("s_add_u32 s66, s66, s64")
    A(f"s_mov_b32 s68, {f32(-2.302208198)}")
    A(f"s_mov_b32 s69, {f32(-2.302208198*0.044715)}")
    A("v_mov_b32 v10, s68")
    POL = " sc1" if "mlpsc1" in EXP else ""
    A(f"s_movk_i32 s63, {HP}")
    A("v_mul_lo_u32 v11, v6, s63")
    A("v_lshrrev_b32 v12, 1, v7")
    A("v_lshl_add_u32 v11, v12, 4, v11")
    A("v_and_b32 v12, 1, v7")
    A("v_lshl_add_u32 v9, v12, 5, v11")
    A(f"s_mov_b32 s63, {16*HP}")
    A("v_mul_lo_u32 v12, v12, s63")
    A("v_add_u32 v11, v11, v12")
    cnt = [0]
    def gelu(a, T, P):
        t, i = (a - ACC) // 16, ((a - ACC) // 4) % 4
        for r in range(4): A(f"v_fma_f32 v{T+r}, v{112+i}, v{CSR[t]+r}, v{64+4*t+r}")
        for r in range(4): A(f"v_fma_f32 v{a+r}, v{105+2*i}, v{a+r}, v{T+r}")
        for r in range(4): A(f"v_mul_f32 v{T+r}, v{a+r}, v{a+r}")
        for r in range(4): A(f"v_fma_f32 v{T+r}, v{T+r}, s69, v10")
        for r in range(4): A(f"v_mul_f32 v{T+r}, v{T+r}, v{a+r}")
        for r in range(4): A(f"v_exp_f32 v{T+r}, v{T+r}")
        for r in range(4): A(f"v_add_f32 v{T+r}, 1.0, v{T+r}")
        for r in range(4): A(f"v_rcp_f32 v{T+r}, v{T+r}")
        for r in range(4): A(f"v_mul_f32 v{T+r}, v{T+r}, v{a+r}")
        A(f"v_cvt_pk_bf16_f32 v{P}, v{T}, v{T+1}")
        A(f"v_cvt_pk_bf16_f32 v{P+1}, v{T+2}, v{T+3}")
    def pair(a0, a1, vaddr, soff, off):
        k = cnt[0] % 4; cnt[0] += 1
        P = 16 + 4 * k; T = 32 + 8 * k
        gelu(a0, T, P); gelu(a1, T + 4, P + 2)
        A("s_nop 1")
        A(f"v_permlane16_swap_b32 v{P}, v{P+2}")
        A(f"v_permlane16_swap_b32 v{P+1}, v{P+3}")
        A(f"buffer_store_dwordx4 v[{P}:{P+3}], v{vaddr}, s[12:15], s{soff} offen offset:{off}{POL}")
    for i in range(4):
        for t in (0, 2, 4):
            pair(acc(t, i), acc(t + 1, i), 9, 66, 32 * t)
        if i & 1:
            pair(acc(6, i - 1), acc(6, i), 11, 67, 192)
        if i < 3:
            A("s_mov_b32 s67, s66")
            A(f"s_add_u32 s66, s66, {16*HP}")
    stamp(A, 3, 58, rg=(1, 3, 4))
    A("s_waitcnt vmcnt(0)")
    stamp(A, 4, 58, rg=(1, 3, 4))
    A("s_endpgm")

def gen_s1_ssm(A):
    A.comment("---------------- SSM role ----------------")
    srd(A, 4, 36, 4 << 20)
    A("s_cmp_lt_u32 s32, 4")
    A("s_cselect_b32 s8, s44, s46")
    A("s_cselect_b32 s9, s45, s47")
    A("s_mov_b32 s10, 0x200000")
    A("s_mov_b32 s11, 0x00020000")
    A("v_lshrrev_b32 v9, 2, v3")
    A("v_and_b32 v10, 3, v3")
    A("v_lshl_add_u32 v9, v9, 4, v10")
    A("v_lshl_add_u32 v112, v9, 11, v4")
    A("s_lshl_b32 s84, s87, 10")
    A("v_add_u32 v112, s84, v112")
    A("v_xor_b32 v113, 64, v112")
    A("s_lshl_b32 s20, s34, 8")
    A("s_lshl_b32 s63, s60, 6")
    A("s_add_u32 s20, s20, s63")
    A("s_lshl_b32 s63, s61, 3")
    A("s_add_u32 s20, s20, s63")
    A("s_lshl_b32 s20, s20, 11")
    for q in range(1, 4):
        A(f"s_add_u32 s{20+q}, s20, {(32*(q&1) + 4*(q>>1))*2048}")
    A("v_lshl_add_u32 v114, v3, 12, v4")
    A("v_add_u32 v114, s84, v114")
    A("s_lshl_b32 s84, s84, 1")
    A("v_xor_b32 v115, 64, v114")
    A("s_lshl_b32 s64, s35, 6")
    A("s_and_b32 s63, s60, 1")
    A("s_lshl_b32 s63, s63, 5")
    A("s_add_u32 s24, s64, s63")
    A("s_add_u32 s24, s24, s61")
    A("s_lshl_b32 s24, s24, 11")
    A(f"s_add_u32 s25, s24, {16*2048}")
    A("s_lshl_b32 s30, s32, 11")
    A(f"s_add_u32 s30, s30, {BOFF1}")
    def dma(slot):
        g = []
        for q in range(4):
            g.append([f"s_add_u32 m0, s29, {slot*SLOT1 + q*1024}", "s_nop 0",
                      f"buffer_load_dwordx4 v{112 + (q & 1)}, s[4:7], s{20+q} offen lds"])
        for q in range(2):
            g.append([f"s_add_u32 m0, s30, {slot*SLOT1 + q*1024}", "s_nop 0",
                      f"buffer_load_dwordx4 v{114+q}, s[8:11], s{24+q} offen lds"])
        g.append([f"v_add_u32 v{112+j}, 128, v{112+j}" for j in range(4)])
        return g
    for slot in range(2):
        for g in dma(slot):
            for x in g: A(x)
    A("s_lshl_b32 s63, s61, 12")
    A(f"s_add_u32 s63, s63, {BOFF1}")
    A("v_add_u32 v108, s63, v8")
    A("v_xor_b32 v109, 64, v108")
    A(f"v_add_u32 v110, {SLOT1}, v108")
    A(f"v_add_u32 v111, {SLOT1}, v109")
    srd(A, 68, 40, 2048); srd(A, 72, 42, 2048); srd(A, 76, 48, 2048)
    A("s_lshl_b32 s63, s61, 5")
    A("s_add_u32 s63, s63, s64")
    A("s_lshl_b32 s63, s63, 1")
    A("v_lshlrev_b32 v9, 2, v6")
    A("buffer_load_dword v16, v9, s[68:71], s63 offen")
    A("buffer_load_dword v17, v9, s[72:75], s63 offen")
    A("buffer_load_dword v18, v9, s[76:79], s63 offen")
    A("s_lshl_b32 s63, s64, 1")
    A("v_lshlrev_b32 v9, 1, v2")
    A("buffer_load_ushort v19, v9, s[68:71], s63 offen")
    A("buffer_load_ushort v20, v9, s[72:75], s63 offen")
    A("buffer_load_ushort v21, v9, s[76:79], s63 offen")
    A(f"s_load_dwordx2 s[50:51], s[0:1], {KA['gw']}")
    A("s_lshl_b32 s85, s34, 8")
    A("s_lshl_b32 s63, s35, 4")
    A("s_add_u32 s85, s85, s63")
    A("s_lshl_b32 s63, s32, 1")
    A("s_add_u32 s85, s85, s63")
    A("s_lshl_b32 s86, s85, 11")
    A("v_lshlrev_b32 v9, 4, v2")
    for j in range(4):
        A(f"buffer_load_dwordx4 v[{32+4*j}:{35+4*j}], v9, s[4:7], s86 offen offset:{1024*j}")
    A("s_waitcnt lgkmcnt(0)")
    srd(A, 80, 50, 2048)
    A("buffer_load_dwordx4 v[48:51], v9, s[80:83], 0 offen")
    A("buffer_load_dwordx4 v[52:55], v9, s[80:83], 0 offen offset:1024")
    A("s_lshl_b32 s63, s34, 4")
    A("s_add_u32 s63, s63, s35")
    A("s_and_b32 s66, s32, 1")
    A("s_lshl_b32 s66, s66, 7")
    A("s_add_u32 s66, s66, s63")
    A("s_lshl_b32 s66, s66, 13")
    A("v_lshlrev_b32 v216, 7, v2")
    A("s_bitcmp1_b32 s32, 1")
    A("s_cselect_b32 s66, 0, s66")
    A("buffer_load_dword v217, v216, s[8:11], s66 offen")
    ACC = 128
    def acc(c, p, i): return ACC + ((c * 2 + p) * 4 + i) * 4
    for r in range(64):
        A(f"v_mov_b32 v{ACC+r}, 0")
    A("s_mov_b32 s65, 0xffff0000")
    A("s_waitcnt vmcnt(7)")
    CST = 200
    for c in range(2):
        for k in range(3):
            if c == 0: A(f"v_lshlrev_b32 v{22+k}, 16, v{16+k}")
            else:      A(f"v_and_b32 v{22+k}, s65, v{16+k}")
        lam_consts(A, 24, 22, 23, [CST+4*c, CST+4*c+1, CST+4*c+2, CST+4*c+3], [26, 27, 28, 29, 30, 31])
    for k in range(3):
        A(f"v_lshlrev_b32 v{22+k}, 16, v{19+k}")
    lam_consts(A, 24, 22, 23, [208, 209, None, None], [26, 27, 28, 29, 30, 31])
    for _ in range(4): csquare(A, 208, 209, 26)
    A("v_mov_b32 v210, v208"); A("v_mov_b32 v211, v209")
    for _ in range(4): csquare(A, 210, 211, 26)
    A("s_waitcnt vmcnt(1)")
    srd(A, 68, 58, 8192, WS_G)
    srd(A, 72, 58, 16384, WS_MR)
    for i in range(8):
        A(f"v_lshlrev_b32 v{80+2*i}, 16, v{48+i}")
        A(f"v_and_b32 v{81+2*i}, s65, v{48+i}")
    X = [56, 220]; Pq = [16, 236]
    SM = [96, 100]
    for j in range(2):
        for i in range(8):
            A(f"v_lshlrev_b32 v{X[j]+2*i}, 16, v{32+8*j+i}")
            A(f"v_and_b32 v{X[j]+2*i+1}, s65, v{32+8*j+i}")
        for i in range(16): A(f"v_mul_f32 v{Pq[j]+i}, v{X[j]+i}, v{80+i}")
        for i in range(8): A(f"v_cvt_pk_bf16_f32 v{32+8*j+i}, v{Pq[j]+2*i}, v{Pq[j]+2*i+1}")
        for i in range(8):
            A(f"v_lshlrev_b32 v{Pq[j]+2*i}, 16, v{32+8*j+i}")
            A(f"v_and_b32 v{Pq[j]+2*i+1}, s65, v{32+8*j+i}")
        A(f"v_add_f32 v{SM[j]}, v{X[j]}, v{X[j]+1}")
        A(f"v_add_f32 v{SM[j]+1}, v{Pq[j]}, v{Pq[j]+1}")
        for i in range(2, 16):
            A(f"v_add_f32 v{SM[j]}, v{SM[j]}, v{X[j]+i}")
            A(f"v_add_f32 v{SM[j]+1}, v{SM[j]+1}, v{Pq[j]+i}")
    wave_sum(A, [96, 97, 100, 101], 76)
    for j in range(2):
        A(f"v_mul_f32 v{SM[j]}, {f32(1.0/1024)}, v{SM[j]}")
        for i in range(16): A(f"v_sub_f32 v{Pq[j]+i}, v{X[j]+i}, v{SM[j]}")
        A(f"v_mul_f32 v{SM[j]+2}, v{Pq[j]}, v{Pq[j]}")
        for i in range(1, 16): A(f"v_fmac_f32 v{SM[j]+2}, v{Pq[j]+i}, v{Pq[j]+i}")
    wave_sum(A, [98, 102], 76)
    for j in range(2):
        v = SM[j] + 2; g = SM[j] + 1
        A(f"v_mul_f32 v{v}, {f32(1.0/1024)}, v{v}")
        round_bf16(A, v, v)
        A(f"v_add_f32 v{v}, {f32(1e-5)}, v{v}")
        round_bf16(A, v, v)
        A(f"v_sqrt_f32 v{v}, v{v}")
        round_bf16(A, g, g)
        A(f"v_mul_f32 v{g}, {f32(-1.4426950408889634)}, v{g}")
        round_bf16(A, v, v)
        A(f"v_exp_f32 v{g}, v{g}")
        A(f"v_rcp_f32 v{33+2*j}, v{v}")
        round_bf16(A, 32 + 2*j, SM[j])
        A(f"v_add_f32 v{g}, 1.0, v{g}")
        A(f"v_rcp_f32 v{g}, v{g}")
        A("s_nop 0")
        round_bf16(A, 36 + j, g)
    A("s_lshl_b32 s63, s85, 2")
    A("s_lshl_b32 s66, s85, 3")
    A("v_mov_b32 v10, 0")
    A("s_mov_b64 exec, 1")
    A("buffer_store_dwordx4 v[32:35], v10, s[72:75], s66 offen sc0 sc1")
    A("buffer_store_dwordx2 v[36:37], v10, s[68:71], s63 offen")
    A("s_mov_b64 exec, -1")
    A("s_nop 1")
    XF = [16, 48]; BF = [32, 64]
    def reads(st, slot, sub):
        out = []
        for i in range(4):
            x = XF[st] + 4 * i
            out.append(f"ds_read_b128 v[{x}:{x+3}], v{104 + 2*slot + sub} offset:{i*2048}")
            c, p = i >> 1, i & 1
            b = BF[st] + 4 * (c * 2 + p)
            out.append(f"ds_read_b128 v[{b}:{b+3}], v{108 + 2*slot + sub} offset:{(64*p + 16*c)*128}")
        return out
    def mfmas(st):
        out = []
        for c in range(2):
            for p in range(2):
                for i in range(4):
                    a = acc(c, p, i); b = BF[st] + 4 * (c * 2 + p); x = XF[st] + 4 * i
                    out.append(f"v_mfma_f32_16x16x32_bf16 v[{a}:{a+3}], v[{x}:{x+3}], v[{b}:{b+3}], v[{a}:{a+3}]")
        return out
    A("s_barrier")
    stamp(A, 1, 58)
    for x in reads(0, 0, 0): A(x)
    def hook():
        A("s_cmp_lg_u32 s31, 4")
        A("s_cbranch_scc1 ssm_h1")
        for j in range(4): A(f"v_subrev_u32 v{112+j}, s84, v{112+j}")
        A.label("ssm_h1")
        A("s_cmp_lg_u32 s31, s88")
        A("s_cbranch_scc1 ssm_h2")
        A("s_lshl_b32 s63, s34, 2")
        A("v_mov_b32 v9, 1")
        A("v_mov_b32 v10, 0")
        A("s_mov_b64 exec, 1")
        A("buffer_atomic_add v9, v10, s[80:83], s63 offen offset:192 sc1")
        A("s_mov_b64 exec, -1")
        A.label("ssm_h2")
    def wait(slot, inloop):
        if slot == 0 and inloop:
            A("s_waitcnt vmcnt(3)")
            A("s_cmp_eq_u32 s31, 7")
            A("s_cbranch_scc1 ssm_w1")
            A("s_waitcnt vmcnt(1)")
            A("s_cmp_eq_u32 s31, s88")
            A("s_cbranch_scc1 ssm_w1")
            A("s_waitcnt vmcnt(0)")
            A.label("ssm_w1")
            A("s_waitcnt lgkmcnt(0)")
        else:
            A("s_waitcnt vmcnt(0) lgkmcnt(0)")
    srd(A, 80, 56, 256)
    A("s_cmp_eq_u32 s32, 0")
    A("s_cselect_b32 s88, 6, 99")
    s1_mainloop(A, "ssm", reads, mfmas, dma, hook=hook, wait=wait)
    stamp(A, 2, 58)
    A("s_nop 7"); A("s_nop 7")
    def el(c, p, tau): return acc(c, p, tau >> 2) + (tau & 3)
    for tau in range(16):
        for c in range(2):
            cr, ci = CST + 4*c + 2, CST + 4*c + 3
            ur, ui = el(c, 0, tau), el(c, 1, tau)
            t0, t1 = 16 + 2*c, 17 + 2*c
            A(f"v_mul_f32 v{t0}, v{ci}, v{ui}")
            A(f"v_mul_f32 v{t1}, v{ci}, v{ur}")
            A(f"v_fma_f32 v{ur}, v{cr}, v{ur}, -v{t0}")
            A(f"v_fma_f32 v{ui}, v{cr}, v{ui}, v{t1}")
    def step(src, dst, tau):
        ins = [[], []]
        for c in range(2):
            lr, li = CST + 4*c, CST + 4*c + 1
            ur, ui = el(c, 0, tau), el(c, 1, tau)
            er, ei = src + 2*c, src + 2*c + 1
            dr, di = dst[c]
            A(f"v_fma_f32 v{28+2*c}, v{lr}, v{er}, v{ur}")
            A(f"v_fma_f32 v{29+2*c}, v{lr}, v{ei}, v{ui}")
        for c in range(2):
            lr, li = CST + 4*c, CST + 4*c + 1
            er, ei = src + 2*c, src + 2*c + 1
            dr, di = dst[c]
            A(f"v_fma_f32 v{dr}, -v{li}, v{ei}, v{28+2*c}")
            A(f"v_fma_f32 v{di}, v{li}, v{er}, v{29+2*c}")
    for c in range(2):
        A(f"v_mov_b32 v{24+2*c}, v{el(c,0,0)}")
        A(f"v_mov_b32 v{25+2*c}, v{el(c,1,0)}")
    cur = 24
    for tau in range(1, 16):
        nxt = 44 - cur
        step(cur, [(nxt, nxt+1), (nxt+2, nxt+3)], tau)
        cur = nxt
    assert cur == 20
    A("s_barrier")
    A("s_lshl_b32 s63, s60, 11")
    A("s_lshl_b32 s66, s61, 8")
    A("s_add_u32 s63, s63, s66")
    A("v_lshlrev_b32 v9, 9, v7")
    A("v_lshl_add_u32 v9, v6, 4, v9")
    A("v_add_u32 v9, s63, v9")
    A("ds_write_b128 v9, v[20:23]")
    A("s_waitcnt lgkmcnt(0)")
    A("s_barrier")
    A("s_cmp_lg_u32 s32, 0")
    A("s_cbranch_scc1 ssm_wait")
    A("v_lshlrev_b32 v10, 3, v2")
    for s in range(16):
        A(f"ds_read_b64 v[{32+2*s}:{33+2*s}], v10 offset:{s*512}")
    srd(A, 68, 58, 65536, WS_E)
    srd(A, 72, 56, 256)
    A("s_waitcnt lgkmcnt(0)")
    def cstep(er, ei, mr, mi, ur, ui):
        A(f"v_fma_f32 v28, v{mr}, v{er}, v{ur}")
        A(f"v_fma_f32 v29, v{mr}, v{ei}, v{ui}")
        A(f"v_fma_f32 v28, -v{mi}, v{ei}, v28")
        A(f"v_fma_f32 v{ei}, v{mi}, v{er}, v29")
        A(f"v_mov_b32 v{er}, v28")
    A("v_mov_b32 v24, v32"); A("v_mov_b32 v25, v33")
    for s in range(1, 16):
        cstep(24, 25, 208, 209, 32+2*s, 33+2*s)
    A("s_lshl_b32 s63, s34, 13")
    A("s_lshl_b32 s66, s35, 9")
    A("s_add_u32 s63, s63, s66")
    A("buffer_store_dwordx2 v[24:25], v10, s[68:71], s63 offen sc0 sc1")
    A("s_waitcnt vmcnt(0)")
    A("s_lshl_b32 s67, 1, s34")
    A("v_mov_b32 v11, s67")
    A("s_lshl_b32 s80, s35, 2")
    A("v_mov_b32 v12, 0")
    A("s_mov_b64 s[82:83], exec")
    A("s_mov_b64 exec, 1")
    A("buffer_atomic_or v11, v12, s[72:75], s80 offen sc1")
    A("s_mov_b64 exec, s[82:83]")
    A("s_sub_u32 s67, s67, 1")
    A("v_mov_b32 v24, 0"); A("v_mov_b32 v25, 0")
    A("s_cmp_eq_u32 s34, 0")
    A("s_cbranch_scc1 ssm_nolook")
    A("s_mov_b32 s81, 0x100000")
    A.label("ssm_poll")
    A("buffer_load_dword v13, v12, s[72:75], s80 offen sc0 sc1")
    A("s_waitcnt vmcnt(0)")
    A("v_readfirstlane_b32 s84, v13")
    A("s_and_b32 s84, s84, s67")
    A("s_cmp_eq_u32 s84, s67")
    A("s_cbranch_scc1 ssm_ready")
    A("s_sleep %s" % os.environ.get("SLP", "8"))
    A("s_sub_u32 s81, s81, 1")
    A("s_cmp_lg_u32 s81, 0")
    A("s_cbranch_scc1 ssm_poll")
    A.label("ssm_ready")
    for cc in range(7):
        if cc:
            A(f"s_cmp_le_u32 s34, {cc}")
            A("s_cbranch_scc1 ssm_loaded")
        A(f"s_add_u32 s84, s66, {cc*8192}")
        A(f"buffer_load_dwordx2 v[{64+2*cc}:{65+2*cc}], v10, s[68:71], s84 offen sc0 sc1")
    A.label("ssm_loaded")
    A("s_waitcnt vmcnt(0)")
    for cc in range(7):
        A(f"s_cmp_le_u32 s34, {cc}")
        A("s_cbranch_scc1 ssm_nolook")
        cstep(24, 25, 210, 211, 64+2*cc, 65+2*cc)
    A.label("ssm_nolook")
    for s in range(16):
        A(f"ds_write_b64 v10, v[24:25] offset:{8192 + s*512}")
        if s < 15:
            cstep(24, 25, 208, 209, 32+2*s, 33+2*s)
    A("s_waitcnt lgkmcnt(0)")
    A.label("ssm_wait")
    A("s_barrier")
    stamp(A, 3, 58)
    A("ds_read_b128 v[20:23], v9 offset:8192")
    A(f"s_mov_b32 s63, {16*HP}")
    A("v_mul_lo_u32 v10, v7, s63")
    A("v_lshl_add_u32 v10, v6, 2, v10")
    A("s_lshl_b32 s66, s34, 8")
    A("s_lshl_b32 s67, s60, 6")
    A("s_add_u32 s66, s66, s67")
    A(f"s_mul_i32 s66, s66, {HP}")
    A("s_lshl_b32 s67, s61, 6")
    A("s_add_u32 s66, s66, s67")
    A("s_lshl_b32 s67, s64, 1")
    A("s_add_u32 s66, s66, s67")
    A(f"s_add_u32 s66, s66, {3584*2}")
    A("s_waitcnt lgkmcnt(0)")
    cur = 20
    for tau in range(16):
        nxt = 44 - cur
        step(cur, [(nxt, nxt+1), (nxt+2, nxt+3)], tau)
        cur = nxt
        o = 32 + 2 * (tau % 8)
        A(f"v_cvt_pk_bf16_f32 v{o}, v{cur}, v{cur+2}")
        A(f"v_cvt_pk_bf16_f32 v{o+1}, -v{cur+1}, -v{cur+3}")
        A(f"buffer_store_dword v{o}, v10, s[12:15], s66 offen")
        A(f"buffer_store_dword v{o+1}, v10, s[12:15], s66 offen offset:2048")
        if tau < 15:
            A(f"s_add_u32 s66, s66, {HP}")
    stamp(A, 4, 58)
    if "nopf" not in EXP and "nopf2" not in EXP:
        A(f"s_load_dwordx2 s[36:37], s[0:1], {KA['w2']}")
        A(f"s_load_dwordx4 s[40:43], s[0:1], {KA['cre']}")
        A("s_lshl_b32 s63, s34, 4")
        A("s_add_u32 s63, s63, s35")
        A("s_lshl_b32 s66, s32, 7")
        A("s_add_u32 s63, s63, s66")
        A("s_waitcnt lgkmcnt(0)")
        srd(A, 68, 36, 3584 * 2048)
        srd(A, 72, 40, 2 << 20)
        srd(A, 76, 42, 2 << 20)
        A("s_lshr_b32 s67, s63, 1")
        A("s_lshl_b32 s66, s67, 13")
        A("s_bitcmp1_b32 s63, 0")
        A("s_cbranch_scc1 ssm_pf1")
        A("s_cmp_lt_u32 s67, %d" % ((int(os.environ.get("KP", "50")) - 32) * 16))
        A("s_cbranch_scc0 ssm_pf3")
        A("buffer_load_dword v217, v216, s[68:71], s66 offen")
        A("s_branch ssm_pf3")
        A.label("ssm_pf1")
        A("s_cmp_lt_u32 s67, 256")
        A("s_cbranch_scc0 ssm_pf3")
        A("buffer_load_dword v218, v216, s[72:75], s66 offen")
        A.label("ssm_pf3")
    if "wb" in EXP:
        A("s_waitcnt vmcnt(0)")
        A("s_barrier")
        A("s_cmp_lg_u32 s32, 7")
        A("s_cbranch_scc1 ssm_nowb")
        A("buffer_wbl2 sc1")
        A.label("ssm_nowb")
    A("s_waitcnt vmcnt(0)")
    stamp(A, 5, 58)

def main():
    hdr = open("cdna_kernels/" + NAME + ".s.ref").read().split("; Override launch")[0]
    A = Asm()
    gen_s1(A)
    launches = [("s1_kernel", 256, 512, 2 * SLOT1 + 12288)]
    kds = [kd("s1_kernel", 256, 100)]
    try:
        import gen2
        gen2.gen_s2(A)
        launches.append(("s2_kernel", 256, 512, gen2.LDS))
        kds.append(kd("s2_kernel", gen2.VGPR, 100))
    except ImportError:
        pass
    out = hdr
    for n, g, b, l in launches:
        out += f"; @launch kernel={n} grid=({g},1,1) block=({b},1,1) lds={l}\n"
    out += '.amdgcn_target "amdgcn-amd-amdhsa--gfx950"\n.text\n'
    out += A.text()
    out += '.section .rodata,"a"\n'
    for k in kds:
        out += ".p2align 6\n" + k
    dst = sys.argv[1] if len(sys.argv) > 1 else "cdna_kernels/" + NAME + ".s"
    open(dst, "w").write(out)

if __name__ == "__main__":
    main()
```

```python
import os
from gen import *
NS = int(os.environ.get("NS", "5"))
SLOT = 32768
BOFF = 16384
LDS = NS * SLOT
VGPR = 256 if "stamp" in EXP else 224
KP = int(os.environ.get("KP", "46"))
POLA = os.environ.get("POLA", " sc1")
POLB = os.environ.get("POLB", "")
ACC2 = 128
ACC1 = 64
YF = [192, 208]
WF = [16, 32]

def mfmas(st, base):
    if "s2nomfma" in EXP: return ["s_nop 0"] * 16
    out = []
    for t in range(4):
        for i in range(4):
            a = base + (t * 4 + i) * 4
            out.append(f"v_mfma_f32_16x16x32_bf16 v[{a}:{a+3}], v[{WF[st]+4*t}:{WF[st]+4*t+3}], v[{YF[st]+4*i}:{YF[st]+4*i+3}], v[{a}:{a+3}]")
    return out

def reads_c(s):
    out = []
    for t in range(4):
        w = WF[s] + 4 * t; y = YF[s] + 4 * t
        out.append(f"ds_read_b128 v[{w}:{w+3}], v{50 + s} offset:{t*2048}")
        out.append(f"ds_read_b128 v[{y}:{y+3}], v{48 + s} offset:{t*2048}")
    return out

def reads_w(s):
    out = []
    for t in range(4):
        w = WF[s] + 4 * t; y = YF[s] + 4 * t
        o = s * 8192 + (t >> 1) * 1024
        b = 52 + (t & 1)
        out.append(f"ds_read_b64_tr_b16 v[{w}:{w+1}], v{b} offset:{o}")
        out.append(f"ds_read_b64_tr_b16 v[{w+2}:{w+3}], v{b} offset:{o+256}")
        out.append(f"ds_read_b128 v[{y}:{y+3}], v{48 + s} offset:{t*2048}")
    return out

def adv(kind):
    out = [f"s_add_u32 s28, s28, {SLOT}", f"s_cmp_eq_u32 s28, {NS*SLOT}", "s_cselect_b32 s28, 0, s28",
           "v_add_u32 v48, s28, v56", "v_add_u32 v49, s28, v57"]
    if kind == "c": out += ["v_add_u32 v50, s28, v58", "v_add_u32 v51, s28, v59"]
    else:           out += ["v_add_u32 v52, s28, v60", "v_add_u32 v53, s28, v61"]
    return out

def cons_iter(A, base, rd_cur, rd_next, kind_next):
    A("s_waitcnt lgkmcnt(0)")
    side = [[r] for r in rd_cur(1)]
    for x in interleave(mfmas(0, base), side): A(x)
    A("s_waitcnt lgkmcnt(0)")
    m = mfmas(1, base)
    if rd_next is None:
        for x in m: A(x)
        return
    a = adv(kind_next)
    side = [a[:4], a[4:] + ["s_barrier"]] + [[r] for r in rd_next(0)]
    for x in interleave(m, side): A(x)

def touch(A, lab):
    if "nopf3" in EXP: return
    A("s_cmp_lg_u32 s31, s20")
    A(f"s_cbranch_scc1 {lab}")
    A("buffer_load_dword v63, v62, s[4:7], s21 offen")
    A.label(lab)

def gen_s2(A):
    assert NS == 5
    A.label("s2_entry")
    A(f"s_load_dwordx2 s[36:37], s[0:1], {KA['x']}")
    A(f"s_load_dwordx4 s[40:43], s[0:1], {KA['cre']}")
    A(f"s_load_dwordx2 s[44:45], s[0:1], {KA['dskip']}")
    A(f"s_load_dwordx4 s[48:51], s[0:1], {KA['w2']}")
    A(f"s_load_dwordx2 s[52:53], s[0:1], {KA['out']}")
    A("v_and_b32 v2, 63, v0")
    A("s_lshl_b32 s88, s34, 12")
    A("s_lshl_b32 s63, s33, 6")
    A("s_add_u32 s88, s88, s63")
    A("s_lshl_b32 s63, s35, 2")
    A("s_add_u32 s88, s88, s63")
    A("s_lshl_b32 s87, s34, 2")
    A("s_and_b32 s34, s2, 1")
    A("s_lshl_b32 s34, s34, 3")
    A("s_and_b32 s35, s2, 2")
    A("s_lshl_b32 s35, s35, 1")
    A("s_add_u32 s34, s34, s35")
    A("s_bfe_u32 s35, s2, 0x20003")
    A("s_add_u32 s34, s34, s35")
    A("s_and_b32 s35, s2, 4")
    A("s_bfe_u32 s3, s2, 0x20005")
    A("s_add_u32 s35, s35, s3")
    if "xl" in EXP:
        A("s_and_b32 s34, s2, 7")
        A("s_lshl_b32 s34, s34, 1")
        A("s_bfe_u32 s35, s2, 0x10003")
        A("s_add_u32 s34, s34, s35")
        A("s_bfe_u32 s35, s2, 0x30004")
    A("s_lshl_b32 s80, s34, 3")
    A("s_add_u32 s80, s80, s35")
    A("s_lshl_b32 s80, s80, 8")
    A("s_xor_b32 s33, s33, 1")
    A("s_lshl_b32 s89, s33, 15")
    A("s_add_u32 s89, s89, s80")
    srd(A, 72, 58, 65536, WS_F)
    A("s_cmp_ge_u32 s32, 4")
    A("s_cbranch_scc1 s2_loader")
    A("v_and_b32 v6, 15, v2")
    A("v_lshrrev_b32 v7, 4, v2")
    A("v_lshrrev_b32 v8, 1, v6")
    A("v_xor_b32 v8, v8, v7")
    A("v_lshlrev_b32 v8, 4, v8")
    A("v_lshl_add_u32 v8, v6, 7, v8")
    A("s_lshr_b32 s60, s32, 1")
    A("s_and_b32 s61, s32, 1")
    A("s_lshl_b32 s63, s60, 13")
    A("v_add_u32 v56, s63, v8")
    A("v_xor_b32 v57, 64, v56")
    A("s_lshl_b32 s63, s61, 13")
    A(f"s_add_u32 s63, s63, {BOFF}")
    A("v_add_u32 v58, s63, v8")
    A("v_xor_b32 v59, 64, v58")
    A("v_lshrrev_b32 v9, 1, v7")
    A("v_lshlrev_b32 v9, 12, v9")
    A("v_and_b32 v10, 1, v7")
    A("v_lshrrev_b32 v11, 2, v6")
    A("v_lshl_add_u32 v11, v10, 3, v11")
    A("v_lshl_add_u32 v9, v11, 6, v9")
    A("v_and_b32 v11, 3, v6")
    A("v_lshl_add_u32 v9, v11, 3, v9")
    A("v_lshl_add_u32 v9, v10, 5, v9")
    A("s_lshl_b32 s64, s61, 11")
    A(f"s_add_u32 s63, s64, {BOFF}")
    A("v_add_u32 v60, s63, v9")
    A("v_xor_b32 v61, 32, v60")
    for j in range(6): A(f"v_mov_b32 v{48+j}, v{56+j}")
    A("s_mov_b32 s28, 0")
    for r in range(64): A(f"v_mov_b32 v{ACC2+r}, 0")
    for r in range(64): A(f"v_mov_b32 v{ACC1+r}, 0")
    A("s_waitcnt lgkmcnt(0)")
    srd(A, 16, 58, 16384, WS_G)
    A("s_lshl_b32 s63, s34, 7")
    A("s_lshl_b32 s64, s60, 6")
    A("s_add_u32 s65, s63, s64")
    A("s_lshl_b32 s66, s65, 3")
    A("v_lshlrev_b32 v9, 2, v6")
    A("s_lshl_b32 s63, s34, 3")
    A("s_add_u32 s63, s63, s35")
    A("s_lshl_b32 s64, s32, 7")
    A("s_add_u32 s63, s63, s64")
    A("v_lshlrev_b32 v62, 7, v2")
    srd(A, 4, 48, 3584 * 2048)
    A("s_cmp_lg_u32 s32, 0")
    A("s_cbranch_scc1 s2_c_nz0")
    srd(A, 76, 56, 256)
    A("s_lshr_b32 s86, s34, 1")
    A("s_lshl_b32 s86, s86, 2")
    A("v_mov_b32 v11, 0")
    A("s_mov_b32 s82, 0x100000")
    A.label("s2_c_mr")
    A("buffer_load_dword v10, v11, s[76:79], s87 offen offset:192 sc0 sc1")
    A("buffer_load_dword v12, v11, s[76:79], s86 offen offset:192 sc0 sc1")
    A("s_waitcnt vmcnt(0)")
    A("v_readfirstlane_b32 s83, v10")
    A("v_readfirstlane_b32 s84, v12")
    A("s_add_u32 s83, s83, s84")
    A("s_cmp_eq_u32 s83, 32")
    A("s_cbranch_scc1 s2_c_nz0")
    A("s_sleep 64")
    A("s_sub_u32 s82, s82, 1")
    A("s_cmp_lg_u32 s82, 0")
    A("s_cbranch_scc1 s2_c_mr")
    A.label("s2_c_nz0")
    A("s_waitcnt vmcnt(0)")
    stamp(A, 5, 58, 0)
    A("s_barrier")
    A("s_cmp_lg_u32 s32, 0")
    A("s_cbranch_scc1 s2_c_nz")
    A("v_lshlrev_b32 v11, 8, v6")
    A("v_xor_b32 v10, 1, v7")
    A("v_lshl_add_u32 v11, v10, 15, v11")
    A("v_mov_b32 v10, 1")
    A("s_cmp_eq_u32 s33, 0")
    A("s_cselect_b32 exec_lo, -1, 0xffff")
    A("s_mov_b32 exec_hi, 0")
    A("buffer_store_dword v10, v11, s[72:75], s88 offen sc0 sc1")
    A("s_mov_b32 exec_lo, 0xffff")
    A("s_cselect_b32 s86, 64, 0")
    A("s_add_u32 s86, s86, s89")
    A("s_mov_b32 s82, 0x100000")
    A.label("s2_c_poll")
    A("buffer_load_dword v10, v9, s[72:75], s86 offen sc0 sc1")
    A("s_waitcnt vmcnt(0)")
    A("v_cmp_eq_u32 vcc, 1, v10")
    A("s_cmpk_eq_u32 vcc_lo, 0xffff")
    A("s_cbranch_scc1 s2_c_go0")
    A("s_sleep %s" % os.environ.get("SLP2", "4"))
    A("s_sub_u32 s82, s82, 1")
    A("s_cmp_lg_u32 s82, 0")
    A("s_cbranch_scc1 s2_c_poll")
    A.label("s2_c_go0")
    A("s_mov_b64 exec, -1")
    A("s_branch s2_c_go")
    A.label("s2_c_nz")
    if "nopf4" not in EXP:
        A("s_cmp_eq_u32 s33, 0")
        A("s_cbranch_scc1 s2_c_go")
        A("s_sub_u32 s64, s63, 128")
        A(f"s_cmp_lt_u32 s64, {(KP-32)*16}")
        A("s_cbranch_scc0 s2_c_go")
        A("s_lshl_b32 s64, s64, 13")
        A("buffer_load_dword v63, v62, s[4:7], s64 offen")
    A.label("s2_c_go")
    A("s_barrier")
    stamp(A, 0, 58, 1)
    for i in range(4):
        A(f"buffer_load_dword v{12+i}, v9, s[16:19], s66 offen offset:{128*i}")
    A("s_cmp_eq_u32 s33, 0")
    A("s_cbranch_scc1 s2_cons_p")
    A("s_cmp_lt_u32 s63, 256")
    A("s_cbranch_scc0 s2_tq1")
    srd(A, 4, 42, 2 << 20)
    A("s_lshl_b32 s21, s63, 13")
    A("s_lshr_b32 s20, s63, 5")
    A("s_sub_u32 s20, 31, s20")
    A("s_branch s2_tq2")
    A.label("s2_tq1")
    A("s_sub_u32 s63, s63, 256")
    A("s_lshl_b32 s21, s63, 13")
    A(f"s_add_u32 s21, s21, {KP*64*2048}")
    A("s_lshr_b32 s20, s63, 4")
    A("s_sub_u32 s20, 22, s20")
    A(f"s_cmp_lt_u32 s63, {(56-KP)*16}")
    A("s_cselect_b32 s20, s20, 99")
    A.label("s2_tq2")
    A("s_barrier")
    for x in reads_c(0): A(x)
    A("s_mov_b32 s31, 31")
    A.label("s2_cc_loop")
    touch(A, "s2_t1")
    cons_iter(A, ACC1, reads_c, reads_c, "c")
    A("s_sub_u32 s31, s31, 1")
    A("s_cmp_lg_u32 s31, 0")
    A("s_cbranch_scc1 s2_cc_loop")
    cons_iter(A, ACC1, reads_c, reads_w, "w")
    A(f"s_mov_b32 s31, {56 - KP - 1}")
    A("s_mov_b32 s20, 99")
    stamp(A, 1, 58, 1)
    A("s_branch s2_cw_loop")
    A.label("s2_cons_p")
    A("s_lshl_b32 s21, s63, 13")
    A(f"s_add_u32 s21, s21, {(KP-32)*64*2048}")
    A("s_lshr_b32 s20, s63, 4")
    A(f"s_sub_u32 s20, {KP - 1}, s20")
    A(f"s_cmp_lt_u32 s63, 512")
    A("s_cselect_b32 s20, s20, 99")
    A("s_barrier")
    stamp(A, 1, 58, 1)
    for x in reads_w(0): A(x)
    A(f"s_mov_b32 s31, {KP - 1}")
    A.label("s2_cw_loop")
    touch(A, "s2_t2")
    cons_iter(A, ACC2, reads_w, reads_w, "w")
    A("s_sub_u32 s31, s31, 1")
    A("s_cmp_lg_u32 s31, 0")
    A("s_cbranch_scc1 s2_cw_loop")
    cons_iter(A, ACC2, reads_w, None, None)
    stamp(A, 2, 58, 1)
    A("s_waitcnt vmcnt(0)")
    for i in range(4):
        A(f"v_sub_f32 v{8+i}, 1.0, v{12+i}")
        round_bf16(A, 8+i, 8+i)
        A(f"v_add_f32 v{12+i}, v{12+i}, v{12+i}")
    A(f"s_add_u32 s28, s28, {SLOT}")
    A(f"s_cmp_eq_u32 s28, {NS*SLOT}")
    A("s_cselect_b32 s28, 0, s28")
    A(f"s_add_u32 s29, s28, {SLOT}")
    A(f"s_cmp_eq_u32 s29, {NS*SLOT}")
    A("s_cselect_b32 s29, 0, s29")
    A("s_cmp_eq_u32 s60, 0")
    A("s_cselect_b32 s28, s28, s29")
    A("s_lshl_b32 s63, s61, 8")
    A("s_add_u32 s28, s28, s63")
    A("v_and_b32 v16, 7, v6")
    A("v_xor_b32 v16, v16, v7")
    A("v_lshlrev_b32 v16, 4, v16")
    A("v_lshl_add_u32 v16, v6, 9, v16")
    A("v_add_u32 v16, s28, v16")
    A("v_xor_b32 v17, 64, v16")
    A("s_cmp_eq_u32 s33, 0")
    A("s_cbranch_scc1 s2_scale_p")
    for t in range(4):
        for i in range(4):
            a = ACC2 + (t*4+i)*4; c = ACC1 + (t*4+i)*4
            for r in range(4): A(f"v_mul_f32 v{c+r}, v{12+i}, v{c+r}")
            for r in range(4): A(f"v_fma_f32 v{a+r}, v{8+i}, v{a+r}, v{c+r}")
            A(f"ds_write_b128 v{16 + (t & 1)}, v[{a}:{a+3}] offset:{i*8192 + (t >> 1)*128}")
    A("s_branch s2_scaled")
    A.label("s2_scale_p")
    for t in range(4):
        for i in range(4):
            a = ACC2 + (t*4+i)*4
            for r in range(4): A(f"v_mul_f32 v{a+r}, v{8+i}, v{a+r}")
            A(f"ds_write_b128 v{16 + (t & 1)}, v[{a}:{a+3}] offset:{i*8192 + (t >> 1)*128}")
    A.label("s2_scaled")
    A("s_waitcnt lgkmcnt(0)")
    A("s_barrier")
    stamp(A, 3, 58, 1)
    A("s_endpgm")

    A.label("s2_loader")
    A("s_sub_u32 s62, s32, 4")
    A("v_lshrrev_b32 v3, 3, v2")
    A("v_and_b32 v4, 7, v2")
    A("v_lshrrev_b32 v5, 1, v3")
    A("v_xor_b32 v4, v4, v5")
    A("v_lshlrev_b32 v4, 4, v4")
    A(f"s_movk_i32 s63, {HP}")
    A("v_mul_lo_u32 v9, v3, s63")
    A("v_add_u32 v48, v9, v4")
    A("v_xor_b32 v49, 64, v48")
    A(f"v_add_u32 v49, {8*HP}, v49")
    A(f"v_add_u32 v50, {16*HP}, v48")
    A(f"v_add_u32 v51, {16*HP}, v49")
    A("v_lshl_add_u32 v52, v3, 11, v4")
    A("v_xor_b32 v53, 64, v52")
    A(f"v_add_u32 v53, {8*2048}, v53")
    A(f"v_add_u32 v54, {16*2048}, v52")
    A(f"v_add_u32 v55, {16*2048}, v53")
    A("v_lshrrev_b32 v9, 2, v2")
    A("v_and_b32 v10, 3, v2")
    A("v_lshrrev_b32 v11, 5, v2")
    A("v_lshlrev_b32 v11, 1, v11")
    A("v_xor_b32 v10, v10, v11")
    A("v_lshlrev_b32 v10, 4, v10")
    A("v_lshl_add_u32 v56, v9, 11, v10")
    for q in range(1, 4): A(f"v_add_u32 v{56+q}, {64*q}, v56")
    A("s_lshl_b32 s20, s34, 7")
    A("s_lshl_b32 s63, s62, 5")
    A("s_add_u32 s65, s20, s63")
    A(f"s_mul_i32 s20, s65, {HP}")
    A("s_lshl_b32 s29, s62, 12")
    A(f"s_add_u32 s30, s29, {NS*SLOT}")
    A("s_lshl_b32 s24, s62, 15")
    A("s_lshl_b32 s63, s35, 8")
    A("s_add_u32 s24, s24, s63")
    A("v_lshrrev_b32 v5, 5, v2")
    A("v_and_b32 v6, 31, v2")
    A("v_lshlrev_b32 v7, 4, v6")
    A("v_lshl_add_u32 v7, v5, 16, v7")
    A("s_lshl_b32 s66, s65, 12")
    A("s_lshl_b32 s63, s35, 9")
    A("s_add_u32 s66, s66, s63")
    A("s_mov_b32 s81, 1")
    A("v_mov_b32 v62, 0")
    A("v_and_b32 v60, 15, v2")
    A("v_lshlrev_b32 v60, 2, v60")
    A("s_waitcnt lgkmcnt(0)")
    srd(A, 4, 58, H_BYTES, WS_H)
    srd(A, 68, 58, 8 << 20, WS_T)
    def issue():
        for q in range(4):
            A(f"s_add_u32 m0, s29, {q*1024}")
            A("s_nop 0")
            A(f"buffer_load_dwordx4 v{48+q}, s[4:7], s21 offen{POLA} lds")
        for q in range(4):
            A(f"s_add_u32 m0, s29, {BOFF + q*1024}")
            A("s_nop 0")
            A(f"buffer_load_dwordx4 v{52+q}, s[8:11], s26 offen{POLB} lds")
        A("s_add_u32 s21, s21, 128")
        A("s_add_u32 s26, s26, s27")
        A(f"s_add_u32 s29, s29, {SLOT}")
        A("s_cmp_eq_u32 s29, s30")
        A(f"s_cselect_b32 s63, {NS*SLOT}, 0")
        A("s_sub_u32 s29, s29, s63")
    def wmode(k0):
        srd(A, 8, 48, 3584 * 2048)
        for q in range(4): A(f"v_mov_b32 v{52+q}, v{56+q}")
        A(f"s_add_u32 s26, s24, {k0*64*2048}")
        A(f"s_mov_b32 s27, {64*2048}")
        A(f"s_add_u32 s21, s20, {k0*128}")
    def issue_b0():
        A("s_waitcnt vmcnt(0)")
        A("s_barrier")
        if "lateb" in EXP: A("s_barrier")
        for s in range(NS):
            for q in range(4):
                A(f"s_add_u32 m0, s29, {s*SLOT + BOFF + q*1024}")
                A("s_nop 0")
                A(f"buffer_load_dwordx4 v{52+q}, s[8:11], s26 offen{POLB} lds")
            A("s_add_u32 s26, s26, s27")
    A("s_cmp_eq_u32 s33, 0")
    A("s_cbranch_scc1 s2_ld_p")
    srd(A, 8, 40, 2 << 20)
    A(f"s_add_u32 s21, s20, {3584*2}")
    A("s_lshl_b32 s26, s35, 7")
    A("s_lshl_b32 s63, s62, 5")
    A("s_add_u32 s26, s26, s63")
    A("s_lshl_b32 s26, s26, 11")
    A("s_movk_i32 s27, 128")
    issue_b0()
    srd(A, 12, 36, 4 << 20)
    srd(A, 16, 44, 2048)
    srd(A, 76, 50, 2048)
    srd(A, 84, 58, 16384, WS_G)
    A("v_lshrrev_b32 v8, 1, v7")
    A("s_lshr_b32 s67, s66, 1")
    for j in range(16):
        A(f"buffer_load_dwordx2 v[{64+2*j}:{65+2*j}], v8, s[12:15], s67 offen offset:{(j & 1)*2048}")
        if j & 1: A("s_add_u32 s67, s67, 4096")
    A("v_lshlrev_b32 v8, 3, v6")
    A("s_lshl_b32 s67, s35, 8")
    A("buffer_load_dwordx2 v[96:97], v8, s[16:19], s67 offen")
    A("buffer_load_dwordx2 v[98:99], v8, s[76:79], s67 offen")
    A("v_lshlrev_b32 v8, 7, v5")
    A("s_lshl_b32 s67, s65, 3")
    A(f"s_mov_b32 s31, {NS + 2}")
    A(f"s_mov_b32 s64, {32 + 56 - KP}")
    if "lateb" not in EXP: A("s_barrier")
    for j in range(4):
        A(f"buffer_load_dwordx4 v[{100+4*j}:{103+4*j}], v8, s[84:87], s67 offen offset:{16*j}")
    A("s_branch s2_ld_a0")
    A.label("s2_ld_p")
    wmode(0)
    issue_b0()
    A(f"s_mov_b32 s31, {NS + 2 + 64}")
    A(f"s_mov_b32 s64, {KP + 64}")
    if "lateb" not in EXP: A("s_barrier")
    A.label("s2_ld_a0")
    for s in range(NS):
        for q in range(4):
            A(f"s_add_u32 m0, s29, {s*SLOT + q*1024}")
            A("s_nop 0")
            A(f"buffer_load_dwordx4 v{48+q}, s[4:7], s21 offen{POLA} lds")
        A("s_add_u32 s21, s21, 128")
    A("s_waitcnt vmcnt(16)")
    A("s_barrier")
    A("s_waitcnt vmcnt(12)")
    A("s_barrier")
    issue()
    A("s_waitcnt vmcnt(16)")
    A("s_barrier")
    issue()
    A("s_waitcnt vmcnt(20)")
    A("s_branch s2_ld_loop1")
    A.label("s2_ld_loop")
    A(f"s_waitcnt vmcnt({8*(NS-2)})")
    A.label("s2_ld_loop1")
    A("s_barrier")
    A("s_cmp_eq_u32 s31, 16")
    A("s_cselect_b32 s8, s42, s8")
    A("s_cselect_b32 s9, s43, s9")
    A("s_cselect_b32 s63, 2048, 0")
    A("s_sub_u32 s26, s26, s63")
    A("s_cmp_lg_u32 s31, 24")
    A("s_cbranch_scc1 s2_ld_g0")
    A("buffer_load_dword v61, v60, s[72:75], s89 offen offset:64 sc0 sc1")
    A.label("s2_ld_g0")
    A("s_cmp_lg_u32 s31, 32")
    A("s_cbranch_scc1 s2_ld_go")
    A("s_mov_b32 s82, 0x100000")
    A.label("s2_ld_hm")
    A("v_cmp_eq_u32 vcc, 1, v61")
    A("s_cmp_eq_u32 vcc_lo, -1")
    A("s_cbranch_scc1 s2_ld_hmok")
    A("s_sleep 8")
    A("buffer_load_dword v61, v60, s[72:75], s89 offen offset:64 sc0 sc1")
    A("s_waitcnt vmcnt(0)")
    A("s_sub_u32 s82, s82, 1")
    A("s_cmp_lg_u32 s82, 0")
    A("s_cbranch_scc1 s2_ld_hm")
    A.label("s2_ld_hmok")
    wmode(KP)
    A.label("s2_ld_go")
    issue()
    A("s_add_u32 s31, s31, 1")
    A("s_cmp_lg_u32 s31, s64")
    A("s_cbranch_scc1 s2_ld_loop")
    A("s_cmp_eq_u32 s33, 0")
    A("s_cbranch_scc1 s2_ld_tail_p")
    A("s_mov_b32 s86, 0xffff0000")
    def unp(d, s):
        A(f"v_lshlrev_b32 v{d}, 16, v{s}")
        A(f"v_and_b32 v{d+1}, s86, v{s}")
        A(f"v_lshlrev_b32 v{d+2}, 16, v{s+1}")
        A(f"v_and_b32 v{d+3}, s86, v{s+1}")
    unp(116, 96); unp(120, 98)
    rows = list(range(16))
    for b in range(NS - 1):
        cnt = (16 + NS - 2) // (NS - 1)
        for j in rows[:cnt]:
            d = ACC2 + 4 * j
            unp(16, 64 + 2*j)
            for r in range(4): A(f"v_mul_f32 v{16+r}, v{16+r}, v{116+r}")
            A("v_cvt_pk_bf16_f32 v20, v16, v17")
            A("v_cvt_pk_bf16_f32 v21, v18, v19")
            A(f"v_sub_f32 v22, 1.0, v{100+j}")
            unp(16, 20)
            round_bf16(A, 22, 22)
            for r in range(4): A(f"v_mul_f32 v{d+r}, v{100+j}, v{16+r}")
            for r in range(4): A(f"v_fmac_f32 v{d+r}, v22, v{120+r}")
        rows = rows[cnt:]
        A(f"s_waitcnt vmcnt({8*(NS-2-b)})")
        A("s_barrier")
    assert not rows
    srd(A, 8, 58, 8 << 20, WS_T)
    A("s_branch s2_fin")
    A.label("s2_ld_tail_p")
    A("buffer_load_dword v61, v62, s[72:75], s80 offen sc0 sc1")
    for b in range(NS - 3):
        A(f"s_waitcnt vmcnt({8*(NS-2-b) + 1})")
        A("s_barrier")
    A("s_waitcnt vmcnt(0)")
    A("s_barrier")
    def tloads():
        A("s_mov_b32 s67, s66")
        for j in range(16):
            A(f"buffer_load_dwordx4 v[{ACC2+4*j}:{ACC2+4*j+3}], v7, s[68:71], s67 offen sc0 sc1")
            A("s_add_u32 s67, s67, 4096")
    A("v_readfirstlane_b32 s83, v61")
    A("s_and_b32 s83, s83, s81")
    A("s_cbranch_scc0 s2_late")
    tloads()
    A("s_barrier")
    A("s_branch s2_tdone")
    A.label("s2_late")
    A("s_barrier")
    A("s_mov_b32 s82, 0x100000")
    A.label("s2_poll")
    A("buffer_load_dword v61, v62, s[72:75], s80 offen sc0 sc1")
    A("s_waitcnt vmcnt(0)")
    A("v_readfirstlane_b32 s83, v61")
    A("s_and_b32 s83, s83, s81")
    A("s_cbranch_scc1 s2_got")
    A("s_sleep 1")
    A("s_sub_u32 s82, s82, 1")
    A("s_cmp_lg_u32 s82, 0")
    A("s_cbranch_scc1 s2_poll")
    A.label("s2_got")
    tloads()
    A.label("s2_tdone")
    srd(A, 8, 52, 8 << 20)
    A.label("s2_fin")
    A("s_lshl_b32 s63, s62, 12")
    A("s_sub_u32 s28, s29, s63")
    A(f"s_add_u32 s29, s28, {SLOT}")
    A(f"s_cmp_eq_u32 s29, {NS*SLOT}")
    A("s_cselect_b32 s29, 0, s29")
    A("s_cmp_lt_u32 s62, 2")
    A("s_cselect_b32 s28, s28, s29")
    A("s_and_b32 s63, s62, 1")
    A("s_lshl_b32 s63, s63, 14")
    A("s_add_u32 s28, s28, s63")
    A("v_lshlrev_b32 v8, 4, v6")
    A("v_lshl_add_u32 v8, v5, 13, v8")
    A("v_add_u32 v8, s28, v8")
    for j in range(1, 8): A(f"v_xor_b32 v{8+j}, {16*j}, v8")
    A("s_barrier")
    stamp(A, 4, 58, 1, "s62")
    for j in range(16):
        A(f"ds_read_b128 v[{64+4*j}:{67+4*j}], v{8 + (j & 7)} offset:{j*512}")
    A("s_mov_b32 s67, s66")
    A("s_cmp_eq_u32 s33, 0")
    A("s_cbranch_scc1 s2_fin_p")
    for j in range(16):
        A(f"s_waitcnt lgkmcnt({15-j})")
        d = ACC2 + 4*j
        for r in range(4): A(f"v_add_f32 v{d+r}, v{d+r}, v{64+4*j+r}")
        A(f"buffer_store_dwordx4 v[{d}:{d+3}], v7, s[8:11], s67 offen sc0 sc1")
        A("s_add_u32 s67, s67, 4096")
    A("s_waitcnt vmcnt(0)")
    A("s_barrier")
    A("s_cmp_lg_u32 s62, 0")
    A("s_cbranch_scc1 s2_done")
    A("v_mov_b32 v61, s81")
    A("s_mov_b64 exec, 1")
    A("buffer_store_dword v61, v62, s[72:75], s80 offen sc0 sc1")
    stamp(A, 5, 58, 1, "s62")
    A("s_endpgm")
    A.label("s2_fin_p")
    for j in range(16):
        A(f"s_waitcnt vmcnt(15) lgkmcnt({15-j})")
        d = ACC2 + 4*j
        for r in range(4): A(f"v_add_f32 v{d+r}, v{d+r}, v{64+4*j+r}")
        A(f"buffer_store_dwordx4 v[{d}:{d+3}], v7, s[8:11], s67 offen")
        A("s_add_u32 s67, s67, 4096")
    stamp(A, 5, 58, 1, "s62")
    A.label("s2_done")
    A("s_endpgm")
```

```python
import struct, sys, os
EXP = os.environ.get("EXP", "").split(",")

NAME = "gated_mix__ssm_conv_s5__mixer_channel_mlp__prompt"
KA = dict(x=0, lre=8, lim=16, bre=24, bim=32, cre=40, cim=48, logdt=56, dskip=64, bx=72,
          w1=80, b1=88, w2=96, b2=104, gw=112, out=120, dbg=128, ws=136)
WS_Y = 0
WS_G = 4 << 20
WS_E = 5 << 20
WS_MR = (4 << 20) + 16384
WS_CS = (4 << 20) + 65536
WS_F = (4 << 20) + 262144
WS_H = 8 << 20
WS_T = 32 << 20
HP = int(os.environ.get("HP", "11264"))
H_BYTES = 2048 * HP

def f32(x):
    return "0x%08x" % struct.unpack("<I", struct.pack("<f", x))[0]

class Asm:
    def __init__(self):
        self.lines = []
        self.cnt = 0
    def __call__(self, s):
        self.lines.append("    " + s)
    def label(self, s):
        self.lines.append(s + ":")
    def newlabel(self, p="L"):
        self.cnt += 1
        return f"{p}_{self.cnt}"
    def comment(self, s):
        self.lines.append("    ; " + s)
    def text(self):
        return "\n".join(self.lines) + "\n"

def vr(a, n=1):
    return f"v{a}" if n == 1 else f"v[{a}:{a+n-1}]"
def sr(a, n=1):
    return f"s{a}" if n == 1 else f"s[{a}:{a+n-1}]"

def srd(A, d, lo, nbytes, off=0):
    if off:
        A(f"s_add_u32 s{d}, s{lo}, {off}")
        A(f"s_addc_u32 s{d+1}, s{lo+1}, 0")
    else:
        A(f"s_mov_b32 s{d}, s{lo}")
        A(f"s_mov_b32 s{d+1}, s{lo+1}")
    A(f"s_mov_b32 s{d+2}, {nbytes}")
    A(f"s_mov_b32 s{d+3}, 0x00020000")

def stamp(A, idx, wsreg, kern=0, wavereg="s32", rg=(253, 254, 255)):
    if "stamp" not in EXP:
        return
    lab = A.newlabel("stamp")
    A(f"s_cmp_lg_u32 {wavereg}, 0")
    A(f"s_cbranch_scc1 {lab}")
    A("s_memrealtime s[92:93]")
    A("s_memtime s[90:91]")
    A(f"s_add_u32 s96, s{wsreg}, {(48 << 20) + kern * 65536}")
    A(f"s_addc_u32 s97, s{wsreg+1}, 0")
    A("s_mov_b32 s98, 65536")
    A("s_mov_b32 s99, 0x00020000")
    A("s_lshl_b32 s94, s2, 5")
    A("s_waitcnt lgkmcnt(0)")
    A(f"v_mov_b32 v{rg[1]}, s92")
    A(f"v_mov_b32 v{rg[2]}, 0")
    A(f"buffer_store_dword v{rg[1]}, v{rg[2]}, s[96:99], s94 offen offset:{idx*4}")
    A(f"v_mov_b32 v{rg[0]}, s90")
    A("s_add_u32 s94, s94, 32768")
    A(f"buffer_store_dword v{rg[0]}, v{rg[2]}, s[96:99], s94 offen offset:{idx*4}")
    A.label(lab)

def kernel_head(A, label):
    A.lines.append(f".globl {label}")
    A.lines.append(".p2align 8")
    A.lines.append(f".type {label},@function")
    A.label(label)

def kd(label, vgpr, sgpr):
    acc = (vgpr + 3) // 4 * 4
    return f""".amdhsa_kernel {label}
  .amdhsa_next_free_vgpr {vgpr}
  .amdhsa_next_free_sgpr {sgpr}
  .amdhsa_accum_offset {acc}
  .amdhsa_group_segment_fixed_size 0
  .amdhsa_kernarg_size 144
  .amdhsa_user_sgpr_count 2
  .amdhsa_user_sgpr_kernarg_segment_ptr 1
  .amdhsa_system_sgpr_workgroup_id_x 1
.end_amdhsa_kernel
"""

def wave_sum(A, regs, stmp):
    for mode in ("quad_perm:[1,0,3,2]", "quad_perm:[2,3,0,1]", "row_half_mirror", "row_mirror"):
        A("s_nop 1")
        for r in regs:
            A(f"v_add_f32_dpp v{r}, v{r}, v{r} {mode} row_mask:0xf bank_mask:0xf")
    for r in regs:
        A("s_nop 1")
        for i in range(4):
            A(f"v_readlane_b32 s{stmp+i}, v{r}, {16*i}")
        A("s_nop 1")
        A(f"v_mov_b32 v{r}, s{stmp}")
        A(f"v_add_f32 v{r}, s{stmp+1}, v{r}")
        A(f"v_add_f32 v{r}, s{stmp+2}, v{r}")
        A(f"v_add_f32 v{r}, s{stmp+3}, v{r}")

def round_bf16(A, d, s):
    A(f"v_cvt_pk_bf16_f32 v{d}, v{s}, v{s}")
    A(f"v_lshlrev_b32 v{d}, 16, v{d}")

def gen_pre(A):
    kernel_head(A, "pre_kernel")
    A("s_cmp_ge_u32 s2, 512")
    A("s_cbranch_scc1 pre_done")
    A(f"s_load_dwordx2 s[4:5], s[0:1], {KA['x']}")
    A(f"s_load_dwordx2 s[6:7], s[0:1], {KA['gw']}")
    A(f"s_load_dwordx2 s[8:9], s[0:1], {KA['ws']}")
    A(f"s_load_dwordx2 s[36:37], s[0:1], {KA['w1']}")
    A(f"s_load_dwordx4 s[44:47], s[0:1], {KA['bre']}")
    A("v_lshrrev_b32 v1, 6, v0")
    A("v_and_b32 v2, 63, v0")
    A("v_readfirstlane_b32 s10, v1")
    A("v_lshlrev_b32 v3, 4, v2")
    A("s_lshl_b32 s11, s2, 2")
    A("s_add_u32 s11, s11, s10")
    A("s_lshl_b32 s12, s11, 11")
    A("s_waitcnt lgkmcnt(0)")
    srd(A, 16, 4, 4 << 20)
    srd(A, 20, 6, 2048)
    srd(A, 24, 8, 4 << 20, WS_Y)
    srd(A, 28, 8, 8192, WS_G)
    stamp(A, 0, 8, 2, "s10")
    A("buffer_load_dwordx4 v[4:7], v3, s[16:19], s12 offen")
    A("buffer_load_dwordx4 v[8:11], v3, s[16:19], s12 offen offset:1024")
    A("buffer_load_dwordx4 v[12:15], v3, s[20:23], 0 offen")
    A("buffer_load_dwordx4 v[16:19], v3, s[20:23], 0 offen offset:1024")
    if "nopf" not in EXP:
        A("v_lshlrev_b32 v56, 7, v2")
        A("s_lshl_b32 s15, s11, 13")
        A("s_cmp_lt_u32 s11, 896")
        A("s_cbranch_scc0 pre_pf1")
        srd(A, 40, 36, 1024 * 7168)
        A("buffer_load_dword v57, v56, s[40:43], s15 offen")
        A("s_branch pre_pf3")
        A.label("pre_pf1")
        A("s_sub_u32 s15, s15, %d" % (896 * 8192))
        A("s_cmp_lt_u32 s11, 1152")
        A("s_cbranch_scc0 pre_pf2")
        srd(A, 40, 44, 2 << 20)
        A("buffer_load_dword v57, v56, s[40:43], s15 offen")
        A("s_branch pre_pf3")
        A.label("pre_pf2")
        A("s_sub_u32 s15, s15, %d" % (256 * 8192))
        A("s_cmp_lt_u32 s11, 1408")
        A("s_cbranch_scc0 pre_pf4")
        srd(A, 40, 46, 2 << 20)
        A("buffer_load_dword v57, v56, s[40:43], s15 offen")
        A("s_branch pre_pf3")
        A.label("pre_pf4")
        A("buffer_load_dword v57, v3, s[20:23], 0 offen")
        A.label("pre_pf3")
    A("s_mov_b32 s13, 0xffff0000")
    A("s_waitcnt vmcnt(%d)" % (2 if "nopf" in EXP else 3))
    for i in range(8):
        A(f"v_lshlrev_b32 v{20+2*i}, 16, v{4+i}")
        A(f"v_and_b32 v{21+2*i}, s13, v{4+i}")
    A("s_waitcnt vmcnt(%d)" % (0 if "nopf" in EXP else 1))
    for i in range(8):
        A(f"v_lshlrev_b32 v{36+2*i}, 16, v{12+i}")
        A(f"v_and_b32 v{37+2*i}, s13, v{12+i}")
    for i in range(16):
        A(f"v_mul_f32 v{36+i}, v{20+i}, v{36+i}")
    for i in range(8):
        A(f"v_cvt_pk_bf16_f32 v{12+i}, v{36+2*i}, v{37+2*i}")
    for i in range(8):
        A(f"v_lshlrev_b32 v{36+2*i}, 16, v{12+i}")
        A(f"v_and_b32 v{37+2*i}, s13, v{12+i}")
    A("v_add_f32 v52, v20, v21")
    A("v_add_f32 v53, v36, v37")
    for i in range(2, 16):
        A(f"v_add_f32 v52, v52, v{20+i}")
        A(f"v_add_f32 v53, v53, v{36+i}")
    wave_sum(A, [52, 53], 32)
    A(f"v_mul_f32 v52, {f32(1.0/1024)}, v52")
    for i in range(16):
        A(f"v_sub_f32 v{36+i}, v{20+i}, v52")
    A("v_mul_f32 v54, v36, v36")
    for i in range(1, 16):
        A(f"v_fmac_f32 v54, v{36+i}, v{36+i}")
    wave_sum(A, [54], 32)
    A(f"v_mul_f32 v54, {f32(1.0/1024)}, v54")
    round_bf16(A, 54, 54)
    A(f"v_add_f32 v54, {f32(1e-5)}, v54")
    round_bf16(A, 54, 54)
    A("v_sqrt_f32 v54, v54")
    A("s_nop 0")
    round_bf16(A, 54, 54)
    A("v_rcp_f32 v54, v54")
    round_bf16(A, 52, 52)
    for i in range(16):
        A(f"v_sub_f32 v{36+i}, v{20+i}, v52")
    for i in range(8):
        A(f"v_cvt_pk_bf16_f32 v{12+i}, v{36+2*i}, v{37+2*i}")
    for i in range(8):
        A(f"v_lshlrev_b32 v{36+2*i}, 16, v{12+i}")
        A(f"v_and_b32 v{37+2*i}, s13, v{12+i}")
    for i in range(16):
        A(f"v_mul_f32 v{36+i}, v{36+i}, v54")
    for i in range(8):
        A(f"v_cvt_pk_bf16_f32 v{4+i}, v{36+2*i}, v{37+2*i}")
    A("buffer_store_dwordx4 v[4:7], v3, s[24:27], s12 offen")
    A("buffer_store_dwordx4 v[8:11], v3, s[24:27], s12 offen offset:1024")
    round_bf16(A, 53, 53)
    A(f"v_mul_f32 v53, {f32(-1.4426950408889634)}, v53")
    A("v_exp_f32 v53, v53")
    A("s_nop 0")
    A("v_add_f32 v53, 1.0, v53")
    A("v_rcp_f32 v53, v53")
    A("s_nop 0")
    round_bf16(A, 53, 53)
    A("s_lshl_b32 s14, s11, 2")
    A("v_mov_b32 v55, 0")
    A("v_cmp_eq_u32 vcc, 0, v2")
    A("s_and_saveexec_b64 s[34:35], vcc")
    A("buffer_store_dword v53, v55, s[28:31], s14 offen")
    if "stamp" in EXP:
        A("s_mov_b64 exec, -1")
        A("s_waitcnt vmcnt(0)")
        stamp(A, 1, 8, 2, "s10")
    A.label("pre_done")
    A("s_endpgm")

def interleave(main, side):
    out = []
    n, m = len(main), len(side)
    j = 0
    for i, x in enumerate(main):
        out.append(x)
        if j < m:
            out.extend(side[j]); j += 1
    while j < m:
        out.extend(side[j]); j += 1
    return out

SLOT1 = 61440
BOFF1 = 32768

def lam_consts(A, vld, vlre, vlim, out, t):
    lr, li, cr, ci = out
    t0, t1, t2, t3, t4, t5 = t
    A(f"v_mul_f32 v{t0}, {f32(1.4426950408889634)}, v{vld}")
    A(f"v_exp_f32 v{t0}, v{t0}")
    A("s_nop 0")
    round_bf16(A, t0, t0)
    A(f"v_mul_f32 v{t1}, v{t0}, v{vlre}")
    A(f"v_mul_f32 v{t2}, v{t0}, v{vlim}")
    A(f"v_mul_f32 v{t1}, {f32(1.4426950408889634)}, v{t1}")
    A(f"v_exp_f32 v{t1}, v{t1}")
    A(f"v_mul_f32 v{t2}, {f32(0.15915494309189535)}, v{t2}")
    A(f"v_rndne_f32 v{t3}, v{t2}")
    A(f"v_sub_f32 v{t2}, v{t2}, v{t3}")
    A(f"v_cos_f32 v{t3}, v{t2}")
    A(f"v_sin_f32 v{t4}, v{t2}")
    A("s_nop 0")
    A(f"v_mul_f32 v{lr}, v{t1}, v{t3}")
    A(f"v_mul_f32 v{li}, v{t1}, v{t4}")
    if cr is None:
        return
    A(f"v_add_f32 v{t0}, -1.0, v{lr}")
    A(f"v_mul_f32 v{t1}, v{vlre}, v{vlre}")
    A(f"v_fmac_f32 v{t1}, v{vlim}, v{vlim}")
    A(f"v_rcp_f32 v{t1}, v{t1}")
    A(f"v_mul_f32 v{t2}, v{t0}, v{vlre}")
    A(f"v_fmac_f32 v{t2}, v{li}, v{vlim}")
    A(f"v_mul_f32 v{t3}, v{li}, v{vlre}")
    A(f"v_fma_f32 v{t3}, -v{t0}, v{vlim}, v{t3}")
    A(f"v_mul_f32 v{cr}, v{t2}, v{t1}")
    A(f"v_mul_f32 v{ci}, v{t3}, v{t1}")

def csquare(A, r, i, t):
    A(f"v_mul_f32 v{t}, v{i}, v{i}")
    A(f"v_mul_f32 v{i}, v{r}, v{i}")
    A(f"v_fma_f32 v{r}, v{r}, v{r}, -v{t}")
    A(f"v_add_f32 v{i}, v{i}, v{i}")

def gen_s1(A):
    kernel_head(A, "s1_kernel")
    A("s_cmp_ge_u32 s2, 256")
    A("s_cbranch_scc1 s1_done")
    A(f"s_load_dwordx2 s[36:37], s[0:1], {KA['x']}")
    A(f"s_load_dwordx4 s[40:43], s[0:1], {KA['lre']}")
    A(f"s_load_dwordx4 s[44:47], s[0:1], {KA['bre']}")
    A(f"s_load_dwordx2 s[48:49], s[0:1], {KA['logdt']}")
    A(f"s_load_dwordx4 s[52:55], s[0:1], {KA['w1']}")
    A(f"s_load_dwordx4 s[56:59], s[0:1], {KA['dbg']}")
    A("v_lshrrev_b32 v1, 6, v0")
    A("v_and_b32 v2, 63, v0")
    A("v_readfirstlane_b32 s32, v1")
    A("s_and_b32 s3, s2, 7")
    A("s_lshr_b32 s33, s2, 3")
    A("s_and_b32 s34, s3, 1")
    A("s_mov_b32 s87, s34")
    A("s_lshl_b32 s34, s34, 2")
    A("s_and_b32 s35, s33, 3")
    A("s_add_u32 s34, s34, s35")
    A("s_lshr_b32 s35, s3, 1")
    A("s_lshl_b32 s35, s35, 2")
    A("s_bfe_u32 s3, s33, 0x20002")
    A("s_add_u32 s35, s35, s3")
    A("s_lshr_b32 s33, s33, 4")
    if "xl" in EXP:
        A("s_and_b32 s34, s2, 7")
        A("s_lshr_b32 s87, s34, 2")
        A("s_bfe_u32 s35, s2, 0x40003")
    A("v_lshrrev_b32 v3, 3, v2")
    A("v_and_b32 v4, 7, v2")
    A("v_lshrrev_b32 v5, 1, v3")
    A("v_xor_b32 v4, v4, v5")
    A("v_lshlrev_b32 v4, 4, v4")
    A("v_and_b32 v6, 15, v2")
    A("v_lshrrev_b32 v7, 4, v2")
    A("v_lshrrev_b32 v8, 1, v6")
    A("v_xor_b32 v8, v8, v7")
    A("v_lshlrev_b32 v8, 4, v8")
    A("v_lshl_add_u32 v8, v6, 7, v8")
    A("s_lshr_b32 s60, s32, 1")
    A("s_and_b32 s61, s32, 1")
    A("s_lshl_b32 s62, s60, 13")
    A("v_add_u32 v104, s62, v8")
    A("v_xor_b32 v105, 64, v104")
    A(f"v_add_u32 v106, {SLOT1}, v104")
    A(f"v_add_u32 v107, {SLOT1}, v105")
    A("s_lshl_b32 s29, s32, 12")
    A("s_waitcnt lgkmcnt(0)")
    srd(A, 12, 58, H_BYTES, WS_H)
    stamp(A, 0, 58)
    A("s_cmp_eq_u32 s33, 0")
    A("s_cbranch_scc1 s1_ssm")
    gen_s1_mlp(A)
    A.label("s1_ssm")
    gen_s1_ssm(A)
    A.label("s1_done")
    A("s_endpgm")

def s1_mainloop(A, tag, reads, mfmas, dma, nk=16, hook=None, extra=None, tail0=None, tail1=None, tail2=None, wait=None):
    if "nomfma" in EXP:
        mfmas = lambda st: ["s_nop 0"] * 16
    if "nodma" in EXP:
        dma = lambda slot: []
    if "noread" in EXP:
        reads = lambda a, b, c: []
    def half_a(slot, ex):
        A("s_waitcnt lgkmcnt(0)")
        for x in interleave(mfmas(0), [[r] for r in reads(1, slot, 1)]):
            A(x)
        if ex and extra: extra(0)
        if wait: wait(slot, ex)
        else: A("s_waitcnt vmcnt(0) lgkmcnt(0)")
        A("s_barrier")
    def half_b(slot, do_dma, do_read, ex, more=None):
        side = []
        rd = [[r] for r in reads(0, slot ^ 1, 0)] if do_read else []
        dm = dma(slot) if do_dma else []
        if more: dm = dm + more
        while rd or dm:
            if "neworder" not in EXP:
                if rd: side.append(rd.pop(0))
                if rd: side.append(rd.pop(0))
                if dm: side.append(dm.pop(0))
            else:
                if dm: side.append(dm.pop(0))
                if rd: side.append(rd.pop(0))
        for x in interleave(mfmas(1), side):
            A(x)
        if ex and extra: extra(1)
    A(f"s_mov_b32 s31, {nk//2 - 1}")
    A.label(f"{tag}_loop")
    if "bodyst" in EXP:
        lab = A.newlabel("bst")
        A("s_cmp_lg_u32 s32, 2")
        A(f"s_cbranch_scc1 {lab}")
        A("s_memtime s[90:91]")
        A(f"s_add_u32 s96, s58, {(48 << 20) + 3 * 65536}")
        A("s_addc_u32 s97, s59, 0")
        A("s_mov_b32 s98, 65536")
        A("s_mov_b32 s99, 0x00020000")
        A("s_lshl_b32 s94, s2, 5")
        A("s_lshl_b32 s95, s31, 2")
        A("s_add_u32 s94, s94, s95")
        A("s_waitcnt lgkmcnt(0)")
        A("v_mov_b32 v1, s90")
        A("v_mov_b32 v3, 0")
        A("buffer_store_dword v1, v3, s[96:99], s94 offen")
        A.label(lab)
    if hook: hook()
    half_a(0, True); half_b(0, True, True, True)
    half_a(1, True); half_b(1, True, True, True)
    A("s_sub_u32 s31, s31, 1")
    A("s_cmp_lg_u32 s31, 0")
    A(f"s_cbranch_scc1 {tag}_loop")
    if tail0: tail0()
    half_a(0, False)
    half_b(0, False, True, False, tail1() if tail1 else None)
    half_a(1, False)
    half_b(1, False, False, False, tail2() if tail2 else None)

def gen_s1_mlp(A):
    A.comment("---------------- MLP-up role ----------------")
    srd(A, 4, 36, 4 << 20)
    srd(A, 8, 52, 1024 * 7168)
    srd(A, 16, 54, 7168)
    A("v_lshl_add_u32 v112, v3, 11, v4")
    A("s_lshl_b32 s84, s87, 10")
    A("v_add_u32 v112, s84, v112")
    A("v_xor_b32 v113, 64, v112")
    A("s_lshl_b32 s20, s34, 8")
    A("s_lshl_b32 s63, s32, 5")
    A("s_add_u32 s20, s20, s63")
    A("s_lshl_b32 s20, s20, 11")
    for q in range(1, 4):
        A(f"s_add_u32 s{20+q}, s20, {q*8*2048}")
    A("v_lshrrev_b32 v9, 2, v2")
    A("v_and_b32 v10, 3, v2")
    A("v_lshrrev_b32 v11, 5, v2")
    A("v_lshlrev_b32 v11, 1, v11")
    A("v_xor_b32 v10, v10, v11")
    A("v_lshlrev_b32 v10, 4, v10")
    A("s_movk_i32 s63, 7168")
    A("v_mul_lo_u32 v9, v9, s63")
    A("v_add_u32 v114, v9, v10")
    A("s_mul_i32 s85, s87, 512*7168")
    A("v_add_u32 v114, s85, v114")
    A("s_lshl_b32 s84, s84, 1")
    A("s_lshl_b32 s85, s85, 1")
    A("s_mul_i32 s24, s60, 16*7168")
    A("s_mul_i32 s64, s35, 448")
    A("s_add_u32 s24, s24, s64")
    A("s_lshl_b32 s63, s61, 8")
    A("s_add_u32 s24, s24, s63")
    for q in range(1, 4):
        A(f"s_add_u32 s{24+q}, s24, {q*64}")
    A("s_mul_i32 s30, s60, 7")
    A("s_lshl_b32 s63, s61, 2")
    A("s_add_u32 s30, s30, s63")
    A("s_lshl_b32 s30, s30, 10")
    A(f"s_add_u32 s30, s30, {BOFF1}")
    A("s_mov_b32 s28, 64*7168")
    def dma(slot):
        g = []
        for q in range(4):
            g.append([f"s_add_u32 m0, s29, {slot*SLOT1 + q*1024}", "s_nop 0",
                      f"buffer_load_dwordx4 v{112 + (q & 1)}, s[4:7], s{20+q} offen lds"])
        for q in range(3):
            g.append([f"s_add_u32 m0, s30, {slot*SLOT1 + q*1024}", "s_nop 0",
                      f"buffer_load_dwordx4 v114, s[8:11], s{24+q} offen lds"])
        lab = A.newlabel("mlp_skip")
        g.append(["s_cmp_lg_u32 s61, 0", f"s_cbranch_scc1 {lab}",
                  f"s_add_u32 m0, s30, {slot*SLOT1 + 3*1024}", "s_nop 0",
                  f"buffer_load_dwordx4 v114, s[8:11], s27 offen lds", f"{lab}:"])
        g.append(["v_add_u32 v112, 128, v112", "v_add_u32 v113, 128, v113", "v_add_u32 v114, s28, v114"])
        return g
    for slot in range(2):
        for g in dma(slot):
            for x in g: A(x)
    A("v_lshrrev_b32 v9, 1, v7")
    A("s_movk_i32 s63, 7168")
    A("v_mul_lo_u32 v9, v9, s63")
    A("v_and_b32 v10, 1, v7")
    A("v_lshrrev_b32 v11, 2, v6")
    A("v_lshl_add_u32 v11, v10, 3, v11")
    A("v_lshl_add_u32 v9, v11, 6, v9")
    A("v_and_b32 v11, 3, v6")
    A("v_lshl_add_u32 v9, v11, 3, v9")
    A("v_lshl_add_u32 v9, v10, 5, v9")
    A("s_lshl_b32 s63, s61, 5")
    A("v_xor_b32 v115, s63, v9")
    A(f"v_add_u32 v115, {BOFF1}, v115")
    A(f"v_add_u32 v5, {SLOT1}, v115")
    A("s_lshl_b32 s63, s61, 12")
    A(f"s_add_u32 s63, s63, {BOFF1}")
    A("v_add_u32 v108, s63, v9")
    A("v_xor_b32 v109, 32, v108")
    A(f"v_add_u32 v110, {SLOT1}, v108")
    A(f"v_add_u32 v111, {SLOT1}, v109")
    A("s_lshl_b32 s63, s34, 4")
    A("s_add_u32 s63, s63, s35")
    A("s_cmp_ge_u32 s32, 3")
    A("s_cselect_b32 s67, 2, 1")
    A("s_add_u32 s67, s67, s32")
    A("s_mul_i32 s67, s67, 128*7168")
    A("s_lshl_b32 s66, s63, 13")
    A("s_add_u32 s66, s66, s67")
    A("s_cmp_lt_u32 s63, 112")
    A("s_cselect_b32 s66, s66, 0")
    A("s_cmp_lt_u32 s32, 6")
    A("s_cselect_b32 s66, s66, 0")
    A("v_lshlrev_b32 v9, 7, v2")
    A("buffer_load_dword v10, v9, s[8:11], s66 offen")
    ACC = 128
    def acc(t, i): return ACC + (t * 4 + i) * 4
    CSR = [116, 120, 124, 240, 244, 248, 252]
    A("s_mov_b32 s65, 0xffff0000")
    for r in range(112): A(f"v_mov_b32 v{ACC+r}, 0")
    for t in range(7):
        for r in range(4): A(f"v_mov_b32 v{CSR[t]+r}, 0")
    for r in range(4): A(f"v_mov_b32 v{12+r}, 0x3f803f80")
    srd(A, 68, 58, 8 * 3584 * 4, WS_CS)
    srd(A, 72, 56, 256)
    srd(A, 76, 58, 16384, WS_MR)
    A("s_and_b32 s86, s34, 3")
    A("s_sub_u32 s86, 7, s86")
    A("s_sub_u32 s88, s86, 1")
    A("s_sub_u32 s89, s86, 2")
    A("s_cmp_eq_u32 s60, 0")
    A("s_cselect_b32 s86, s86, 99")
    A("s_cselect_b32 s88, s88, 99")
    A("s_cmp_eq_u32 s32, 0")
    A("s_cselect_b32 s89, s89, 99")
    A("s_cselect_b32 s83, 1, 99")
    A("s_lshl_b32 s80, s61, 9")
    A("s_lshl_b32 s81, s64, 1")
    A("s_add_u32 s80, s80, s81")
    A("s_mul_i32 s62, s61, 448")
    A("s_waitcnt vmcnt(8)")
    YF = [16, 60]; WF = [32, 76]
    def reads(st, slot, sub):
        out = []
        for t in range(7):
            base = 108 + 2 * slot + (t & 1)
            if t == 6: base = 5 if slot else 115
            off = (2 * sub * 7 + (t >> 1)) * 1024
            d = WF[st] + 4 * t
            out.append(f"ds_read_b64_tr_b16 v[{d}:{d+1}], v{base} offset:{off}")
            out.append(f"ds_read_b64_tr_b16 v[{d+2}:{d+3}], v{base} offset:{off+256}")
            if t < 4:
                y = YF[st] + 4 * t
                out.append(f"ds_read_b128 v[{y}:{y+3}], v{104 + 2*slot + sub} offset:{t*2048}")
        return out
    def mfmas(st):
        out = []
        for t in range(7):
            for i in range(4):
                a = acc(t, i)
                out.append(f"v_mfma_f32_16x16x32_bf16 v[{a}:{a+3}], v[{WF[st]+4*t}:{WF[st]+4*t+3}], v[{YF[st]+4*i}:{YF[st]+4*i+3}], v[{a}:{a+3}]")
        return out
    A("s_barrier")
    stamp(A, 1, 58, rg=(1, 3, 4))
    for x in reads(0, 0, 0): A(x)
    def extra(st):
        lab = A.newlabel("mlp_cs")
        A("s_cmp_lg_u32 s31, s86")
        A(f"s_cbranch_scc1 {lab}")
        for t in range(7):
            a = CSR[t]
            A(f"v_mfma_f32_16x16x32_bf16 v[{a}:{a+3}], v[{WF[st]+4*t}:{WF[st]+4*t+3}], v[12:15], v[{a}:{a+3}]")
        A.label(lab)
    def hook():
        A("s_cmp_lg_u32 s31, 4")
        A("s_cbranch_scc1 mlp_h1")
        A("v_subrev_u32 v112, s84, v112")
        A("v_subrev_u32 v113, s84, v113")
        A("v_subrev_u32 v114, s85, v114")
        A.label("mlp_h1")
        A("s_cmp_lg_u32 s31, s88")
        A("s_cbranch_scc1 mlp_h2")
        A("s_nop 7"); A("s_nop 7")
        A("s_mul_i32 s63, s34, 3584*4")
        A("s_add_u32 s63, s63, s80")
        A("v_lshlrev_b32 v9, 4, v7")
        A("s_mov_b32 exec_lo, 0x00010001")
        A("s_mov_b32 exec_hi, 0x00010001")
        for t in range(7):
            if t == 6: A("s_sub_u32 s63, s63, s62")
            A(f"buffer_store_dwordx4 v[{CSR[t]}:{CSR[t]+3}], v9, s[68:71], s63 offen offset:{64*t} sc0 sc1")
        A("s_mov_b64 exec, -1")
        A.label("mlp_h2")
        A("s_cmp_lg_u32 s31, s89")
        A("s_cbranch_scc1 mlp_h3")
        A("s_lshl_b32 s63, s35, 2")
        A("v_mov_b32 v9, 1")
        A("v_mov_b32 v10, 0")
        A("s_mov_b64 exec, 1")
        A("buffer_atomic_add v9, v10, s[72:75], s63 offen offset:128 sc1")
        A("s_mov_b64 exec, -1")
        A.label("mlp_h3")
        A("s_cmp_lg_u32 s31, s83")
        A("s_cbranch_scc1 mlp_h4")
        flagloads()
        A.label("mlp_h4")
    def flagloads():
        A("v_mov_b32 v10, 0")
        A("s_lshl_b32 s63, s35, 2")
        A("s_lshl_b32 s66, s34, 2")
        A("buffer_load_dword v8, v10, s[72:75], s63 offen offset:128 sc0 sc1")
        A("buffer_load_dword v9, v10, s[72:75], s66 offen offset:192 sc0 sc1")
    def tail0():
        A("s_cmp_lg_u32 s32, 0")
        A("s_cbranch_scc1 mlp_ready")
        A("s_mov_b32 s81, 0x100000")
        A.label("mlp_poll")
        A("v_readfirstlane_b32 s82, v8")
        A("v_readfirstlane_b32 s83, v9")
        A("s_lshl_b32 s82, s82, 8")
        A("s_or_b32 s82, s82, s83")
        A("s_cmpk_eq_u32 s82, 0x810")
        A("s_cbranch_scc1 mlp_ready")
        A("s_sleep 16")
        flagloads()
        A("s_waitcnt vmcnt(0)")
        A("s_sub_u32 s81, s81, 1")
        A("s_cmp_lg_u32 s81, 0")
        A("s_cbranch_scc1 mlp_poll")
        A.label("mlp_ready")
    XB = 2 * SLOT1
    def tail1():
        A("v_lshlrev_b32 v112, 4, v2")
        A("s_mul_i32 s63, s32, 3584*4")
        A("s_lshl_b32 s66, s64, 1")
        A("s_add_u32 s63, s63, s66")
        A("v_lshlrev_b32 v113, 2, v2")
        A("s_lshl_b32 s66, s34, 11")
        A("s_lshl_b32 s67, s32, 8")
        A("s_add_u32 s66, s66, s67")
        A("v_lshlrev_b32 v114, 3, v7")
        return [[f"buffer_load_dwordx4 v[8:11], v112, s[68:71], s63 offen sc0 sc1"],
                [f"buffer_load_dword v12, v113, s[76:79], s66 offen sc0 sc1"]]
    def tailw():
        A("s_mul_i32 s63, s32, 1040")
        A(f"s_add_u32 s63, s63, {XB}")
        A("v_add_u32 v112, s63, v112")
        A(f"s_add_u32 s67, s67, {XB + 8448}")
        A("v_add_u32 v113, s67, v113")
        A("s_waitcnt vmcnt(0)")
        A("ds_write_b128 v112, v[8:11]")
        A("ds_write_b32 v113, v12")
        A("v_and_b32 v112, 7, v6")
        A("s_movk_i32 s63, 1040")
        A("v_mul_lo_u32 v112, v112, s63")
        A("v_lshl_add_u32 v112, v7, 4, v112")
        A("s_lshl_b32 s63, s61, 9")
        A(f"s_add_u32 s63, s63, {XB}")
        A("v_add_u32 v112, s63, v112")
        A("v_subrev_u32 v12, s62, v112")
        A("s_lshr_b32 s62, s62, 1")
        A("s_lshl_b32 s63, s60, 9")
        A(f"s_add_u32 s63, s63, {XB + 8448}")
        A("v_lshlrev_b32 v113, 3, v6")
        A("v_add_u32 v113, s63, v113")
        A("s_lshr_b32 s66, s80, 1")
        A("s_sub_u32 s67, s66, s62")
        A("s_waitcnt lgkmcnt(0)")
    def tail2():
        g = []
        for t in range(7):
            g.append([f"buffer_load_dwordx2 v[{16+2*t}:{17+2*t}], v114, s[16:19], s{67 if t == 6 else 66} offen offset:{32*t}",
                      f"ds_read_b128 v[{CSR[t]}:{CSR[t]+3}], v{12 if t == 6 else 112} offset:{64*t}"])
        g.append([f"ds_read_b64 v[{8+2*i}:{9+2*i}], v113 offset:{128*i}" for i in range(4)])
        g.append([]); g.append(["s_waitcnt lgkmcnt(0)"])
        k = 0
        L = []
        for mode in ("quad_perm:[1,0,3,2]", "quad_perm:[2,3,0,1]", "row_half_mirror"):
            for t in range(7):
                L += [f"v_add_f32_dpp v{CSR[t]+r}, v{CSR[t]+r}, v{CSR[t]+r} {mode} row_mask:0xf bank_mask:0xf" for r in range(4)]
        while L:
            g.append(L[:5]); L = L[5:]
        return g
    def wait(slot, inloop):
        if slot == 1 and not inloop:
            tailw()
        elif slot == 1:
            A("s_waitcnt vmcnt(0) lgkmcnt(0)")
        elif inloop:
            A("s_cmp_eq_u32 s31, s88")
            A("s_cbranch_scc1 mlp_w1")
            A("s_waitcnt vmcnt(2)")
            A("s_cmp_eq_u32 s31, s83")
            A("s_cbranch_scc1 mlp_w1")
            A("s_waitcnt vmcnt(1)")
            A("s_cmp_eq_u32 s31, s89")
            A("s_cbranch_scc1 mlp_w1")
            A("s_cmp_eq_u32 s31, 7")
            A("s_cbranch_scc1 mlp_w1")
            A("s_waitcnt vmcnt(0)")
            A.label("mlp_w1")
            A("s_waitcnt vmcnt(7) lgkmcnt(0)")
        else:
            A("s_waitcnt vmcnt(0) lgkmcnt(0)")
    s1_mainloop(A, "mlp", reads, mfmas, dma, hook=hook, extra=extra, tail0=tail0, tail1=tail1, tail2=tail2, wait=wait)
    stamp(A, 2, 58, rg=(1, 3, 4))
    for i in range(4):
        A(f"v_mov_b32 v{105+2*i}, v{9+2*i}")
        A(f"v_mul_f32 v{112+i}, -v{8+2*i}, v{9+2*i}")
    A("s_waitcnt vmcnt(0)")
    for t in range(7):
        A(f"v_lshlrev_b32 v{64+4*t}, 16, v{16+2*t}")
        A(f"v_and_b32 v{65+4*t}, s65, v{16+2*t}")
        A(f"v_lshlrev_b32 v{66+4*t}, 16, v{17+2*t}")
        A(f"v_and_b32 v{67+4*t}, s65, v{17+2*t}")

    A(f"s_movk_i32 s63, {HP}")
    A("v_mul_lo_u32 v9, v6, s63")
    A("v_lshl_add_u32 v9, v7, 3, v9")
    A("s_lshl_b32 s66, s34, 8")
    A("s_lshl_b32 s67, s60, 6")
    A("s_add_u32 s66, s66, s67")
    A(f"s_mul_i32 s66, s66, {HP}")
    A("s_add_u32 s66, s66, s64")
    A(f"s_mul_i32 s67, s61, {32*HP}")
    A("s_add_u32 s67, s67, s66")
    A("s_lshl_b32 s63, s61, 8")
    A("s_add_u32 s66, s66, s63")
    A(f"s_mov_b32 s68, {f32(-2.302208198)}")
    A(f"s_mov_b32 s69, {f32(-2.302208198*0.044715)}")
    A("v_mov_b32 v10, s68")
    POL = os.environ.get("POLH", " sc1")
    A(f"s_movk_i32 s63, {HP}")
    A("v_mul_lo_u32 v11, v6, s63")
    A("v_lshrrev_b32 v12, 1, v7")
    A("v_lshl_add_u32 v11, v12, 4, v11")
    A("v_and_b32 v12, 1, v7")
    A("v_lshl_add_u32 v9, v12, 5, v11")
    A("s_lshl_b32 s63, s32, 10")
    A("v_lshlrev_b32 v11, 4, v2")
    A("v_add_u32 v11, s63, v11")
    A("v_xor_b32 v12, 1024, v11")
    cnt = [0]
    def gelu(a, T, P):
        t, i = (a - ACC) // 16, ((a - ACC) // 4) % 4
        for r in range(4): A(f"v_fma_f32 v{T+r}, v{112+i}, v{CSR[t]+r}, v{64+4*t+r}")
        for r in range(4): A(f"v_fma_f32 v{a+r}, v{105+2*i}, v{a+r}, v{T+r}")
        for r in range(4): A(f"v_mul_f32 v{T+r}, v{a+r}, v{a+r}")
        for r in range(4): A(f"v_fma_f32 v{T+r}, v{T+r}, s69, v10")
        for r in range(4): A(f"v_mul_f32 v{T+r}, v{T+r}, v{a+r}")
        for r in range(4): A(f"v_exp_f32 v{T+r}, v{T+r}")
        for r in range(4): A(f"v_add_f32 v{T+r}, 1.0, v{T+r}")
        for r in range(4): A(f"v_rcp_f32 v{T+r}, v{T+r}")
        for r in range(4): A(f"v_mul_f32 v{T+r}, v{T+r}, v{a+r}")
        A(f"v_cvt_pk_bf16_f32 v{P}, v{T}, v{T+1}")
        A(f"v_cvt_pk_bf16_f32 v{P+1}, v{T+2}, v{T+3}")
    def pair(a0, a1, vaddr, soff, off):
        k = cnt[0] % 4; cnt[0] += 1
        P = 16 + 4 * k; T = 32 + 8 * k
        gelu(a0, T, P); gelu(a1, T + 4, P + 2)
        A("s_nop 1")
        A(f"v_permlane16_swap_b32 v{P}, v{P+2}")
        A(f"v_permlane16_swap_b32 v{P+1}, v{P+3}")
        A(f"buffer_store_dwordx4 v[{P}:{P+3}], v{vaddr}, s[12:15], s{soff} offen offset:{off}{POL}")
    A("s_cmp_lg_u32 s61, 0")
    A("s_cbranch_scc1 mlp_x1")
    for wn in range(2):
        gelu(acc(6, 2 - 2*wn), 32, 100); gelu(acc(6, 3 - 2*wn), 36, 102)
        A("ds_write_b128 v11, v[100:103]")
        gelu(acc(6, 2*wn), 40, 92 + 2*wn); gelu(acc(6, 2*wn + 1), 44, 96 + 2*wn)
        if wn == 0:
            A("s_branch mlp_x2")
            A.label("mlp_x1")
    A.label("mlp_x2")
    for i in range(4):
        if i == 3:
            A("s_waitcnt lgkmcnt(0)")
            A("s_barrier")
            A("s_cmp_lg_u32 s61, 0")
            A("s_cbranch_scc1 mlp_x3")
            A("ds_read_b64 v[94:95], v12")
            A("ds_read_b64 v[98:99], v12 offset:8")
            A("s_branch mlp_x4")
            A.label("mlp_x3")
            A("ds_read_b64 v[92:93], v12")
            A("ds_read_b64 v[96:97], v12 offset:8")
            A.label("mlp_x4")
        for t in (0, 2, 4):
            pair(acc(t, i), acc(t + 1, i), 9, 66, 32 * t)
        if i < 3:
            A(f"s_add_u32 s66, s66, {16*HP}")
    A("s_waitcnt lgkmcnt(0)")
    for k, P in enumerate((92, 96)):
        A(f"v_permlane16_swap_b32 v{P}, v{P+2}")
        A(f"v_permlane16_swap_b32 v{P+1}, v{P+3}")
        A(f"buffer_store_dwordx4 v[{P}:{P+3}], v9, s[12:15], s67 offen offset:192{POL}")
        if k == 0: A(f"s_add_u32 s67, s67, {16*HP}")
    stamp(A, 3, 58, rg=(1, 3, 4))
    A("s_branch s2_entry")

def gen_s1_ssm(A):
    A.comment("---------------- SSM role ----------------")
    srd(A, 4, 36, 4 << 20)
    A("s_cmp_lg_u32 s32, 0")
    A("s_cbranch_scc1 ssm_nz")
    srd(A, 68, 58, 65536, WS_F)
    A("s_lshl_b32 s63, s34, 4")
    A("s_add_u32 s63, s63, s35")
    A("s_lshl_b32 s63, s63, 8")
    A("v_lshrrev_b32 v9, 5, v2")
    A("v_and_b32 v10, 31, v2")
    A("v_lshlrev_b32 v10, 2, v10")
    A("v_lshl_add_u32 v9, v9, 15, v10")
    A("v_mov_b32 v10, 0")
    A("buffer_store_dword v10, v9, s[68:71], s63 offen sc0 sc1")
    A.label("ssm_nz")
    A("s_cmp_lt_u32 s32, 4")
    A("s_cselect_b32 s8, s44, s46")
    A("s_cselect_b32 s9, s45, s47")
    A("s_mov_b32 s10, 0x200000")
    A("s_mov_b32 s11, 0x00020000")
    A("v_lshrrev_b32 v9, 2, v3")
    A("v_and_b32 v10, 3, v3")
    A("v_lshl_add_u32 v9, v9, 4, v10")
    A("v_lshl_add_u32 v112, v9, 11, v4")
    A("s_lshl_b32 s84, s87, 10")
    A("v_add_u32 v112, s84, v112")
    A("v_xor_b32 v113, 64, v112")
    A("s_lshl_b32 s20, s34, 8")
    A("s_lshl_b32 s63, s60, 6")
    A("s_add_u32 s20, s20, s63")
    A("s_lshl_b32 s63, s61, 3")
    A("s_add_u32 s20, s20, s63")
    A("s_lshl_b32 s20, s20, 11")
    for q in range(1, 4):
        A(f"s_add_u32 s{20+q}, s20, {(32*(q&1) + 4*(q>>1))*2048}")
    A("v_lshl_add_u32 v114, v3, 12, v4")
    A("v_add_u32 v114, s84, v114")
    A("s_lshl_b32 s84, s84, 1")
    A("v_xor_b32 v115, 64, v114")
    A("s_lshl_b32 s64, s35, 6")
    A("s_and_b32 s63, s60, 1")
    A("s_lshl_b32 s63, s63, 5")
    A("s_add_u32 s24, s64, s63")
    A("s_add_u32 s24, s24, s61")
    A("s_lshl_b32 s24, s24, 11")
    A(f"s_add_u32 s25, s24, {16*2048}")
    A("s_lshl_b32 s30, s32, 11")
    A(f"s_add_u32 s30, s30, {BOFF1}")
    def dma(slot):
        g = []
        for q in range(4):
            g.append([f"s_add_u32 m0, s29, {slot*SLOT1 + q*1024}", "s_nop 0",
                      f"buffer_load_dwordx4 v{112 + (q & 1)}, s[4:7], s{20+q} offen lds"])
        for q in range(2):
            g.append([f"s_add_u32 m0, s30, {slot*SLOT1 + q*1024}", "s_nop 0",
                      f"buffer_load_dwordx4 v{114+q}, s[8:11], s{24+q} offen lds"])
        g.append([f"v_add_u32 v{112+j}, 128, v{112+j}" for j in range(4)])
        return g
    for slot in range(2):
        for g in dma(slot):
            for x in g: A(x)
    A("s_lshl_b32 s63, s61, 12")
    A(f"s_add_u32 s63, s63, {BOFF1}")
    A("v_add_u32 v108, s63, v8")
    A("v_xor_b32 v109, 64, v108")
    A(f"v_add_u32 v110, {SLOT1}, v108")
    A(f"v_add_u32 v111, {SLOT1}, v109")
    srd(A, 68, 40, 2048); srd(A, 72, 42, 2048); srd(A, 76, 48, 2048)
    A("s_lshl_b32 s63, s61, 5")
    A("s_add_u32 s63, s63, s64")
    A("s_lshl_b32 s63, s63, 1")
    A("v_lshlrev_b32 v9, 2, v6")
    A("buffer_load_dword v16, v9, s[68:71], s63 offen")
    A("buffer_load_dword v17, v9, s[72:75], s63 offen")
    A("buffer_load_dword v18, v9, s[76:79], s63 offen")
    A("s_lshl_b32 s63, s64, 1")
    A("v_lshlrev_b32 v9, 1, v2")
    A("buffer_load_ushort v19, v9, s[68:71], s63 offen")
    A("buffer_load_ushort v20, v9, s[72:75], s63 offen")
    A("buffer_load_ushort v21, v9, s[76:79], s63 offen")
    A(f"s_load_dwordx2 s[50:51], s[0:1], {KA['gw']}")
    A(f"s_load_dwordx2 s[40:41], s[0:1], {KA['cre']}")
    A("s_lshl_b32 s85, s34, 8")
    A("s_lshl_b32 s63, s35, 4")
    A("s_add_u32 s85, s85, s63")
    A("s_lshl_b32 s63, s32, 1")
    A("s_add_u32 s85, s85, s63")
    A("s_lshl_b32 s86, s85, 11")
    A("v_lshlrev_b32 v9, 4, v2")
    for j in range(4):
        A(f"buffer_load_dwordx4 v[{32+4*j}:{35+4*j}], v9, s[4:7], s86 offen offset:{1024*j}")
    A("s_waitcnt lgkmcnt(0)")
    srd(A, 80, 50, 2048)
    A("buffer_load_dwordx4 v[48:51], v9, s[80:83], 0 offen")
    A("buffer_load_dwordx4 v[52:55], v9, s[80:83], 0 offen offset:1024")
    A("s_lshl_b32 s63, s34, 4")
    A("s_add_u32 s63, s63, s35")
    A("s_and_b32 s66, s32, 1")
    A("s_lshl_b32 s66, s66, 7")
    A("s_add_u32 s66, s66, s63")
    A("s_lshl_b32 s66, s66, 13")
    A("v_lshlrev_b32 v216, 7, v2")
    A("s_bitcmp1_b32 s32, 1")
    A("s_cselect_b32 s66, 0, s66")
    A("buffer_load_dword v217, v216, s[8:11], s66 offen")
    ACC = 128
    def acc(c, p, i): return ACC + ((c * 2 + p) * 4 + i) * 4
    for r in range(64):
        A(f"v_mov_b32 v{ACC+r}, 0")
    A("s_mov_b32 s65, 0xffff0000")
    A("s_waitcnt vmcnt(7)")
    CST = 200
    for c in range(2):
        for k in range(3):
            if c == 0: A(f"v_lshlrev_b32 v{22+k}, 16, v{16+k}")
            else:      A(f"v_and_b32 v{22+k}, s65, v{16+k}")
        lam_consts(A, 24, 22, 23, [CST+4*c, CST+4*c+1, CST+4*c+2, CST+4*c+3], [26, 27, 28, 29, 30, 31])
    for k in range(3):
        A(f"v_lshlrev_b32 v{22+k}, 16, v{19+k}")
    lam_consts(A, 24, 22, 23, [208, 209, None, None], [26, 27, 28, 29, 30, 31])
    for _ in range(4): csquare(A, 208, 209, 26)
    A("v_mov_b32 v210, v208"); A("v_mov_b32 v211, v209")
    for _ in range(4): csquare(A, 210, 211, 26)
    A("s_waitcnt vmcnt(1)")
    srd(A, 68, 58, 16384, WS_G)
    srd(A, 72, 58, 16384, WS_MR)
    for i in range(8):
        A(f"v_lshlrev_b32 v{80+2*i}, 16, v{48+i}")
        A(f"v_and_b32 v{81+2*i}, s65, v{48+i}")
    X = [56, 220]; Pq = [16, 236]
    SM = [96, 100]
    for j in range(2):
        for i in range(8):
            A(f"v_lshlrev_b32 v{X[j]+2*i}, 16, v{32+8*j+i}")
            A(f"v_and_b32 v{X[j]+2*i+1}, s65, v{32+8*j+i}")
        for i in range(16): A(f"v_mul_f32 v{Pq[j]+i}, v{X[j]+i}, v{80+i}")
        for i in range(8): A(f"v_cvt_pk_bf16_f32 v{32+8*j+i}, v{Pq[j]+2*i}, v{Pq[j]+2*i+1}")
        for i in range(8):
            A(f"v_lshlrev_b32 v{Pq[j]+2*i}, 16, v{32+8*j+i}")
            A(f"v_and_b32 v{Pq[j]+2*i+1}, s65, v{32+8*j+i}")
        A(f"v_add_f32 v{SM[j]}, v{X[j]}, v{X[j]+1}")
        A(f"v_add_f32 v{SM[j]+1}, v{Pq[j]}, v{Pq[j]+1}")
        for i in range(2, 16):
            A(f"v_add_f32 v{SM[j]}, v{SM[j]}, v{X[j]+i}")
            A(f"v_add_f32 v{SM[j]+1}, v{SM[j]+1}, v{Pq[j]+i}")
    wave_sum(A, [96, 97, 100, 101], 76)
    for j in range(2):
        A(f"v_mul_f32 v{SM[j]}, {f32(1.0/1024)}, v{SM[j]}")
        for i in range(16): A(f"v_sub_f32 v{Pq[j]+i}, v{X[j]+i}, v{SM[j]}")
        A(f"v_mul_f32 v{SM[j]+2}, v{Pq[j]}, v{Pq[j]}")
        for i in range(1, 16): A(f"v_fmac_f32 v{SM[j]+2}, v{Pq[j]+i}, v{Pq[j]+i}")
    wave_sum(A, [98, 102], 76)
    for j in range(2):
        v = SM[j] + 2; g = SM[j] + 1
        A(f"v_mul_f32 v{v}, {f32(1.0/1024)}, v{v}")
        round_bf16(A, v, v)
        A(f"v_add_f32 v{v}, {f32(1e-5)}, v{v}")
        round_bf16(A, v, v)
        A(f"v_sqrt_f32 v{v}, v{v}")
        round_bf16(A, g, g)
        A(f"v_mul_f32 v{g}, {f32(-1.4426950408889634)}, v{g}")
        round_bf16(A, v, v)
        A(f"v_exp_f32 v{g}, v{g}")
        A(f"v_rcp_f32 v{33+2*j}, v{v}")
        round_bf16(A, 32 + 2*j, SM[j])
        A(f"v_add_f32 v{g}, 1.0, v{g}")
        A(f"v_rcp_f32 v{g}, v{g}")
        A("s_nop 0")
        round_bf16(A, 36 + j, g)
    A("s_lshr_b32 s63, s85, 4")
    A("s_lshl_b32 s63, s63, 7")
    A("s_lshl_b32 s66, s32, 3")
    A("s_add_u32 s63, s63, s66")
    A("s_lshl_b32 s66, s85, 3")
    A("v_mov_b32 v10, 0")
    A("s_mov_b64 exec, 1")
    A("buffer_store_dwordx4 v[32:35], v10, s[72:75], s66 offen sc0 sc1")
    A("buffer_store_dwordx2 v[36:37], v10, s[68:71], s63 offen sc0 sc1")
    A("s_mov_b64 exec, -1")
    A("s_nop 1")
    XF = [16, 48]; BF = [32, 64]
    def reads(st, slot, sub):
        out = []
        for i in range(4):
            x = XF[st] + 4 * i
            out.append(f"ds_read_b128 v[{x}:{x+3}], v{104 + 2*slot + sub} offset:{i*2048}")
            c, p = i >> 1, i & 1
            b = BF[st] + 4 * (c * 2 + p)
            out.append(f"ds_read_b128 v[{b}:{b+3}], v{108 + 2*slot + sub} offset:{(64*p + 16*c)*128}")
        return out
    def mfmas(st):
        out = []
        for c in range(2):
            for p in range(2):
                for i in range(4):
                    a = acc(c, p, i); b = BF[st] + 4 * (c * 2 + p); x = XF[st] + 4 * i
                    out.append(f"v_mfma_f32_16x16x32_bf16 v[{a}:{a+3}], v[{x}:{x+3}], v[{b}:{b+3}], v[{a}:{a+3}]")
        return out
    A("s_barrier")
    stamp(A, 1, 58)
    for x in reads(0, 0, 0): A(x)
    def hook():
        A("s_cmp_lg_u32 s31, 4")
        A("s_cbranch_scc1 ssm_h1")
        for j in range(4): A(f"v_subrev_u32 v{112+j}, s84, v{112+j}")
        A.label("ssm_h1")
        A("s_cmp_lg_u32 s31, s88")
        A("s_cbranch_scc1 ssm_h2")
        A("s_lshl_b32 s63, s34, 2")
        A("v_mov_b32 v9, 1")
        A("v_mov_b32 v10, 0")
        A("s_mov_b64 exec, 1")
        A("buffer_atomic_add v9, v10, s[80:83], s63 offen offset:192 sc1")
        A("s_mov_b64 exec, -1")
        A.label("ssm_h2")
    def wait(slot, inloop):
        if slot == 0 and inloop:
            A("s_waitcnt vmcnt(3)")
            A("s_cmp_eq_u32 s31, 7")
            A("s_cbranch_scc1 ssm_w1")
            A("s_waitcnt vmcnt(1)")
            A("s_cmp_eq_u32 s31, s88")
            A("s_cbranch_scc1 ssm_w1")
            A("s_waitcnt vmcnt(0)")
            A.label("ssm_w1")
            A("s_waitcnt lgkmcnt(0)")
        else:
            A("s_waitcnt vmcnt(0) lgkmcnt(0)")
    srd(A, 80, 56, 256)
    A("s_cmp_eq_u32 s32, 0")
    A("s_cselect_b32 s88, 6, 99")
    s1_mainloop(A, "ssm", reads, mfmas, dma, hook=hook, wait=wait)
    stamp(A, 2, 58)
    if "nopf2" not in EXP:
        A("s_cmp_lt_u32 s32, 6")
        A("s_cbranch_scc1 ssm_pf3")
        A("s_lshl_b32 s63, s34, 4")
        A("s_add_u32 s63, s63, s35")
        A("s_lshl_b32 s66, s61, 7")
        A("s_add_u32 s63, s63, s66")
        A("s_lshl_b32 s66, s63, 13")
        srd(A, 72, 40, 2 << 20)
        A("buffer_load_dword v218, v216, s[72:75], s66 offen")
        A.label("ssm_pf3")
    A("s_nop 7"); A("s_nop 7")
    def el(c, p, tau): return acc(c, p, tau >> 2) + (tau & 3)
    for tau in range(16):
        for c in range(2):
            cr, ci = CST + 4*c + 2, CST + 4*c + 3
            ur, ui = el(c, 0, tau), el(c, 1, tau)
            t0, t1 = 16 + 2*c, 17 + 2*c
            A(f"v_mul_f32 v{t0}, v{ci}, v{ui}")
            A(f"v_mul_f32 v{t1}, v{ci}, v{ur}")
            A(f"v_fma_f32 v{ur}, v{cr}, v{ur}, -v{t0}")
            A(f"v_fma_f32 v{ui}, v{cr}, v{ui}, v{t1}")
    def step(src, dst, tau):
        ins = [[], []]
        for c in range(2):
            lr, li = CST + 4*c, CST + 4*c + 1
            ur, ui = el(c, 0, tau), el(c, 1, tau)
            er, ei = src + 2*c, src + 2*c + 1
            dr, di = dst[c]
            A(f"v_fma_f32 v{28+2*c}, v{lr}, v{er}, v{ur}")
            A(f"v_fma_f32 v{29+2*c}, v{lr}, v{ei}, v{ui}")
        for c in range(2):
            lr, li = CST + 4*c, CST + 4*c + 1
            er, ei = src + 2*c, src + 2*c + 1
            dr, di = dst[c]
            A(f"v_fma_f32 v{dr}, -v{li}, v{ei}, v{28+2*c}")
            A(f"v_fma_f32 v{di}, v{li}, v{er}, v{29+2*c}")
    for c in range(2):
        A(f"v_mov_b32 v{24+2*c}, v{el(c,0,0)}")
        A(f"v_mov_b32 v{25+2*c}, v{el(c,1,0)}")
    cur = 24
    for tau in range(1, 16):
        nxt = 44 - cur
        step(cur, [(nxt, nxt+1), (nxt+2, nxt+3)], tau)
        cur = nxt
    assert cur == 20
    A("s_barrier")
    A("s_lshl_b32 s63, s60, 11")
    A("s_lshl_b32 s66, s61, 8")
    A("s_add_u32 s63, s63, s66")
    A("v_lshlrev_b32 v9, 9, v7")
    A("v_lshl_add_u32 v9, v6, 4, v9")
    A("v_add_u32 v9, s63, v9")
    A("ds_write_b128 v9, v[20:23]")
    A("s_waitcnt lgkmcnt(0)")
    A("s_barrier")
    A("s_cmp_lg_u32 s32, 0")
    A("s_cbranch_scc1 ssm_wait")
    A("v_lshlrev_b32 v10, 3, v2")
    for s in range(16):
        A(f"ds_read_b64 v[{32+2*s}:{33+2*s}], v10 offset:{s*512}")
    srd(A, 68, 58, 65536, WS_E)
    srd(A, 72, 56, 256)
    A("s_waitcnt lgkmcnt(0)")
    def cstep(er, ei, mr, mi, ur, ui):
        A(f"v_fma_f32 v28, v{mr}, v{er}, v{ur}")
        A(f"v_fma_f32 v29, v{mr}, v{ei}, v{ui}")
        A(f"v_fma_f32 v28, -v{mi}, v{ei}, v28")
        A(f"v_fma_f32 v{ei}, v{mi}, v{er}, v29")
        A(f"v_mov_b32 v{er}, v28")
    A("v_mov_b32 v24, v32"); A("v_mov_b32 v25, v33")
    for s in range(1, 16):
        cstep(24, 25, 208, 209, 32+2*s, 33+2*s)
    A("s_lshl_b32 s63, s34, 13")
    A("s_lshl_b32 s66, s35, 9")
    A("s_add_u32 s63, s63, s66")
    A("buffer_store_dwordx2 v[24:25], v10, s[68:71], s63 offen sc0 sc1")
    A("s_waitcnt vmcnt(0)")
    A("s_lshl_b32 s67, 1, s34")
    A("v_mov_b32 v11, s67")
    A("s_lshl_b32 s80, s35, 2")
    A("v_mov_b32 v12, 0")
    A("s_mov_b64 s[82:83], exec")
    A("s_mov_b64 exec, 1")
    A("buffer_atomic_or v11, v12, s[72:75], s80 offen sc1")
    A("s_mov_b64 exec, s[82:83]")
    A("s_sub_u32 s67, s67, 1")
    A("v_mov_b32 v24, 0"); A("v_mov_b32 v25, 0")
    A("s_cmp_eq_u32 s34, 0")
    A("s_cbranch_scc1 ssm_nolook")
    A("s_mov_b32 s81, 0x100000")
    A.label("ssm_poll")
    A("buffer_load_dword v13, v12, s[72:75], s80 offen sc0 sc1")
    A("s_waitcnt vmcnt(0)")
    A("v_readfirstlane_b32 s84, v13")
    A("s_and_b32 s84, s84, s67")
    A("s_cmp_eq_u32 s84, s67")
    A("s_cbranch_scc1 ssm_ready")
    A("s_sleep %s" % os.environ.get("SLP", "8"))
    A("s_sub_u32 s81, s81, 1")
    A("s_cmp_lg_u32 s81, 0")
    A("s_cbranch_scc1 ssm_poll")
    A.label("ssm_ready")
    for cc in range(7):
        if cc:
            A(f"s_cmp_le_u32 s34, {cc}")
            A("s_cbranch_scc1 ssm_loaded")
        A(f"s_add_u32 s84, s66, {cc*8192}")
        A(f"buffer_load_dwordx2 v[{64+2*cc}:{65+2*cc}], v10, s[68:71], s84 offen sc0 sc1")
    A.label("ssm_loaded")
    A("s_waitcnt vmcnt(0)")
    for cc in range(7):
        A(f"s_cmp_le_u32 s34, {cc}")
        A("s_cbranch_scc1 ssm_nolook")
        cstep(24, 25, 210, 211, 64+2*cc, 65+2*cc)
    A.label("ssm_nolook")
    for s in range(16):
        A(f"ds_write_b64 v10, v[24:25] offset:{8192 + s*512}")
        if s < 15:
            cstep(24, 25, 208, 209, 32+2*s, 33+2*s)
    A("s_waitcnt lgkmcnt(0)")
    A.label("ssm_wait")
    A("s_barrier")
    stamp(A, 3, 58)
    A("ds_read_b128 v[20:23], v9 offset:8192")
    A(f"s_mov_b32 s63, {16*HP}")
    A("v_mul_lo_u32 v10, v7, s63")
    A("v_lshl_add_u32 v10, v6, 2, v10")
    A("s_lshl_b32 s66, s34, 8")
    A("s_lshl_b32 s67, s60, 6")
    A("s_add_u32 s66, s66, s67")
    A(f"s_mul_i32 s66, s66, {HP}")
    A("s_lshl_b32 s67, s61, 6")
    A("s_add_u32 s66, s66, s67")
    A("s_lshl_b32 s67, s64, 1")
    A("s_add_u32 s66, s66, s67")
    A(f"s_add_u32 s66, s66, {3584*2}")
    A("s_waitcnt lgkmcnt(0)")
    POL = os.environ.get("POLH", " sc1")
    cur = 20
    for tau in range(16):
        nxt = 44 - cur
        step(cur, [(nxt, nxt+1), (nxt+2, nxt+3)], tau)
        cur = nxt
        o = 32 + 2 * (tau % 8)
        A(f"v_cvt_pk_bf16_f32 v{o}, v{cur}, v{cur+2}")
        A(f"v_cvt_pk_bf16_f32 v{o+1}, -v{cur+1}, -v{cur+3}")
        A(f"buffer_store_dword v{o}, v10, s[12:15], s66 offen{POL}")
        A(f"buffer_store_dword v{o+1}, v10, s[12:15], s66 offen offset:2048{POL}")
        if tau < 15:
            A(f"s_add_u32 s66, s66, {HP}")
    A("s_branch s2_entry")

def main():
    hdr = open("cdna_kernels/" + NAME + ".s.ref").read().split("; Override launch")[0]
    A = Asm()
    gen_s1(A)
    import gen2
    gen2.gen_s2(A)
    launches = [("s1_kernel", 256, 512, gen2.LDS)]
    kds = [kd("s1_kernel", 256, 100)]
    out = hdr
    for n, g, b, l in launches:
        out += f"; @launch kernel={n} grid=({g},1,1) block=({b},1,1) lds={l}\n"
    out += '.amdgcn_target "amdgcn-amd-amdhsa--gfx950"\n.text\n'
    out += A.text()
    out += '.section .rodata,"a"\n'
    for k in kds:
        out += ".p2align 6\n" + k
    dst = sys.argv[1] if len(sys.argv) > 1 else "cdna_kernels/" + NAME + ".s"
    open(dst, "w").write(out)

if __name__ == "__main__":
    main()
```
